```python
import torch

def _softmax(x, axis=-1):
    return torch.softmax(x, dim=axis)
def _gelu(x):
    return torch.nn.functional.gelu(x, approximate="tanh")
def _silu(x):
    return torch.nn.functional.silu(x)
def _sigmoid(x):
    return torch.sigmoid(x)
def _layernorm(x, axis=-1, eps=1e-5):
    m = x.mean(dim=axis, keepdim=True)
    v = x.var(dim=axis, keepdim=True, unbiased=False)
    return (x - m) / torch.sqrt(v + eps)
def _scatter_add(tgt, idx, src, axis=0):
    return tgt.clone().index_add_(axis, idx, src)
def _segment_sum(src, seg, n):
    out = torch.zeros((n,) + src.shape[1:], dtype=src.dtype)
    return out.index_add_(0, seg, src)
def _pad(x, pw):
    flat = tuple(v for pair in reversed(pw) for v in pair)
    return torch.nn.functional.pad(x, flat)

kernel_name = 'standalone__weight_only_int_gptq__prompt'

def setup_inputs():

    _w = (lambda a: (lambda t: t.to(torch.bfloat16) if t.is_floating_point() else t)(torch.as_tensor(a)))
    B, S, D, F = 1, 2048, 576, 4608
    bits = max(2, min(4, 3))
    pf = 32 // bits
    G = -1 if -1 > 0 else D
    G = max(pf, (G // pf) * pf)
    D = max(G, (D // G) * G)
    ng = D // G
    qmax = 1 << bits
    qw = torch.randint(0, qmax, (D, F)).to(torch.int64)
    packed = torch.zeros((D // pf, F), dtype=torch.int64)
    for i in range(pf):
        packed |= (qw[i::pf] << (i * bits))
    packed = packed.to(torch.int32)
    return {
        "x": _w((lambda *s: torch.randn(*s, dtype=torch.bfloat16) * 0.05)(B, S, D)),
        "qw_packed": _w(packed),
        "scales": _w(torch.abs((lambda *s: torch.randn(*s, dtype=torch.bfloat16) * 0.05)(ng, F)).to(float) * 0.1 + 0.01),
        "zeros": _w(torch.randint(0, qmax, (ng, F)).to(float)),
        "bits": _w((lambda _x: torch.as_tensor(_x, dtype=torch.int32))(bits)),
    }

def reference(x, qw_packed, scales, zeros, bits):
    b = int(bits)
    pf = 32 // b
    mask = (1 << b) - 1
    P, F = qw_packed.shape
    D = P * pf
    ng = scales.shape[0]
    G = D // ng
    shifts = (lambda x, dt: x.to(dt))(torch.arange(pf) * b, qw_packed.dtype)
    qw = ((qw_packed[:, None, :] >> shifts[None, :, None]) & mask).reshape(D, F)
    s = (lambda x, n, axis: torch.repeat_interleave(x, n, dim=axis))(scales, G, axis=0)
    z = (lambda x, n, axis: torch.repeat_interleave(x, n, dim=axis))(zeros, G, axis=0)
    w = ((lambda x, dt: x.to(dt))(qw, x.dtype) - z) * s
    return torch.einsum("bsd,df->bsf", x, w)
```

```python
import sys

M, KD, N = 2048, 570, 4608
XROW = KD * 2
NKS = 18
LDSBUF = 81920
LDS_TOTAL = 2 * LDSBUF

V_TID = 0
V_T = [16, 17, 18, 19, 20, 21, 22, 23]
V_STG = [8, 12]
V_LANE = 1
V_VA = 2
V_VB = 3
V_VW = 4
V_VQ = 5
V_VO = 6
V_VS = 7
V_VBA = 24
V_VBB = 25
V_RG = 26
V_VO2 = 27
CTX = [dict(q=28, s=36, zs=37, s2=38, zs2=39),
       dict(q=40, s=48, zs=49, s2=50, zs2=51)]
V_BF = 52
V_ACC = 84
V_A = 116


def layout():
    global V_BF, V_ACC, V_A
    V_A = 256 - 144
    V_ACC = V_A - 32
    V_BF = V_ACC - 32
    global CTX, V_VBA, V_VBB, V_RG, V_VO2
    CTX = [dict(q=24, s=32, zs=33, s2=34, zs2=35),
           dict(q=36, s=44, zs=45, s2=46, zs2=47)]
    V_VBA = 1
    V_VBB = 2
    V_RG = 7
    V_VO2 = 6


layout()


def afrag(mb, s):
    return V_A + (s * 2 + mb) * 4


def acc(nb, mb):
    return V_ACC + (nb * 2 + mb) * 4


def bfrag(t, nb):
    return V_BF + t * 16 + nb * 4


def r4(b):
    return f"v[{b}:{b + 3}]"


def r2(b):
    return f"v[{b}:{b + 1}]"


S_XSRD = 16
S_QSRD = 20
S_SSRD = 24
S_ZSRD = 28
S_OSRD = 32
S_A1 = 36
S_O1 = 37
S_QD = 38
S_WAVE = 46
S_M0 = 47
S_NC0 = 48
S_T = 49
S_T2 = 50


class K:
    def __init__(self):
        self.out = []
        self.vm = 0
        self.lg = 0
        self.vm_done = -1
        self.lg_done = -1

    def e(self, s):
        self.out.append("    " + s)

    def label(self, s):
        self.out.append(s + ":")

    def c(self, s):
        self.out.append("    ; " + s)

    def vmem(self, s):
        self.e(s)
        self.vm += 1
        return self.vm - 1

    def lds(self, s):
        self.e(s)
        self.lg += 1
        return self.lg - 1

    def wait_vm(self, seq):
        if seq <= self.vm_done:
            return
        n = min(self.vm - 1 - seq, 63)
        self.e(f"s_waitcnt vmcnt({n})")
        self.vm_done = max(self.vm_done, self.vm - 1 - n)

    def wait_lg(self, seq):
        if seq <= self.lg_done:
            return
        n = min(self.lg - 1 - seq, 15)
        self.e(f"s_waitcnt lgkmcnt({n})")
        self.lg_done = max(self.lg_done, self.lg - 1 - n)

    def wait_lg_all(self):
        self.e("s_waitcnt lgkmcnt(0)")
        self.lg_done = self.lg - 1

    def fork(self):
        k = K()
        k.vm, k.lg, k.vm_done, k.lg_done = self.vm, self.lg, self.vm_done, self.lg_done
        return k


def issue_dq_loads(k, ctx, p, nrows=8):
    c = CTX[ctx]
    off = 128 * p if p < 2 else 0
    qoff = 256 * p if p < 2 else 0
    k.vmem(f"buffer_load_ushort v{c['s']}, v{V_RG}, s[{S_SSRD}:{S_SSRD+3}], 0 offen offset:{off}")
    k.vmem(f"buffer_load_ushort v{c['zs']}, v{V_RG}, s[{S_ZSRD}:{S_ZSRD+3}], 0 offen offset:{off}")
    seq = None
    for d in range(nrows):
        so = "0" if d == 0 else f"s{S_QD + d - 1}"
        seq = k.vmem(f"buffer_load_dword v{c['q'] + d}, v{V_VQ}, s[{S_QSRD}:{S_QSRD+3}], {so} offen offset:{qoff}")
    return seq


def dq_stream(ctx, last_seq, rg_is_lane_based):
    c = CTX[ctx]
    V = []
    V.append(lambda k: k.wait_vm(last_seq))
    V.append(lambda k: k.e(f"v_lshlrev_b32 v{c['s']}, 16, v{c['s']}"))
    V.append(lambda k: k.e(f"v_lshlrev_b32 v{c['zs']}, 16, v{c['zs']}"))
    V.append(lambda k: k.e(f"v_mul_f32 v{c['zs']}, v{c['zs']}, v{c['s']}"))
    if rg_is_lane_based:
        V.append(lambda k: k.e(f"v_lshrrev_b32 v{V_T[0]}, 4, v{V_TID}"))
        V.append(lambda k: k.e(f"v_cmp_ne_u32 vcc, 7, v{V_T[0]}"))
    else:
        V.append(lambda k: k.e(f"v_mov_b32 v{V_T[0]}, s{S_WAVE}"))
        V.append(lambda k: k.e(f"v_cmp_ne_u32 vcc, 7, v{V_T[0]}"))
    V.append(lambda k: k.e("s_nop 1"))
    V.append(lambda k: k.e(f"v_cndmask_b32 v{c['s2']}, 0, v{c['s']}, vcc"))
    V.append(lambda k: k.e(f"v_cndmask_b32 v{c['zs2']}, 0, v{c['zs']}, vcc"))
    for t0 in range(0, 80, 4):
        tm = [V_T[(t0 // 4 % 2) * 4 + i] for i in range(4)]
        for i in range(4):
            t = t0 + i
            d, f = divmod(t, 10)
            V.append(lambda k, i=i, d=d, f=f, tm=tm: k.e(f"v_bfe_u32 v{tm[i]}, v{c['q'] + d}, {3 * f}, 3"))
        for i in range(4):
            V.append(lambda k, i=i, tm=tm: k.e(f"v_cvt_f32_u32 v{tm[i]}, v{tm[i]}"))
        for i in range(4):
            t = t0 + i
            d = t // 10
            sr, zr = (c['s'], c['zs']) if d == 0 else (c['s2'], c['zs2'])
            V.append(lambda k, i=i, tm=tm, sr=sr, zr=zr: k.e(f"v_fma_f32 v{tm[i]}, v{tm[i]}, v{sr}, -v{zr}"))
        chunk, pos = divmod(t0, 8)
        stg = V_STG[chunk % 2]
        for h in range(2):
            V.append(lambda k, h=h, tm=tm, stg=stg, pos=pos:
                     k.e(f"v_cvt_pk_bf16_f32 v{stg + pos // 2 + h}, v{tm[2 * h]}, v{tm[2 * h + 1]}"))
        if pos == 4:
            V.append(lambda k, stg=stg, chunk=chunk:
                     k.lds(f"ds_write_b128 v{V_VW}, {r4(stg)} offset:{chunk * 1024}"))
    return V


def phase(k, p, V, first=False, seqA=None):
    nblk = 4 if p < 2 else 1
    bufbase = (p & 1) * LDSBUF
    k.c(f"---- phase {p} ----")
    k.e(f"v_add_u32 v{V_VBA}, {bufbase}, v{V_VB}")
    k.e(f"v_add_u32 v{V_VBB}, {bufbase + 9 * 4096}, v{V_VB}")

    def reads(s):
        seqs = []
        for nb in range(nblk):
            if s < 9:
                base, off = V_VBA, s * 4096 + nb * 256
            else:
                base, off = V_VBB, (s - 9) * 4096 + nb * 256
            seqs.append(k.lds(f"ds_read_b128 {r4(bfrag(s & 1, nb))}, v{base} offset:{off}"))
        return seqs

    nm_total = NKS * nblk * 2
    m_start = nblk * 2 * 1
    m_end = nm_total - nblk * 2
    vi = 0
    mcount = 0
    rs = reads(0)
    for s in range(NKS):
        k.wait_lg(rs[-1])
        if first:
            k.wait_vm(seqA[s][1])
            if s == NKS - 1:
                k.e(f"v_and_b32 v{V_T[0]}, 63, v{V_TID}")
                k.e(f"v_cmp_gt_u32 vcc, 48, v{V_T[0]}")
                k.e("s_nop 1")
                for mb in range(2):
                    for j in range(1, 4):
                        a = afrag(mb, s) + j
                        k.e(f"v_cndmask_b32 v{a}, 0, v{a}, vcc")
                k.e("s_nop 1")
        if s < NKS - 1:
            rs = reads(s + 1)
        for nb in range(nblk):
            for mb in range(2):
                cop = "0" if s == 0 else r4(acc(nb, mb))
                k.e(f"v_mfma_f32_16x16x32_bf16 {r4(acc(nb, mb))}, {r4(bfrag(s & 1, nb))}, {r4(afrag(mb, s))}, {cop}")
                mcount += 1
                if V and mcount > m_start:
                    frac = min(1.0, (mcount - m_start) / float(m_end - m_start))
                    target = int(len(V) * frac + 0.999)
                    while vi < target:
                        V[vi](k)
                        vi += 1
    while V and vi < len(V):
        V[vi](k)
        vi += 1
    k.e("s_nop 7")
    k.e("s_nop 1")
    if p < 2:
        si = 0
        for mb in range(2):
            for pp in range(2):
                stg = [V_STG[0], V_STG[1], V_T[0], V_T[4]][si % 4]
                si += 1
                P, Q = acc(2 * pp, mb), acc(2 * pp + 1, mb)
                k.e(f"v_cvt_pk_bf16_f32 v{stg}, v{P}, v{P + 1}")
                k.e(f"v_cvt_pk_bf16_f32 v{stg + 1}, v{P + 2}, v{P + 3}")
                k.e(f"v_cvt_pk_bf16_f32 v{stg + 2}, v{Q}, v{Q + 1}")
                k.e(f"v_cvt_pk_bf16_f32 v{stg + 3}, v{Q + 2}, v{Q + 3}")
                so = "0" if mb == 0 else f"s{S_O1}"
                k.vmem(f"buffer_store_dwordx4 {r4(stg)}, v{V_VO}, s[{S_OSRD}:{S_OSRD+3}], {so} offen offset:{128 * p + 64 * pp}")
    else:
        for mb in range(2):
            stg = V_STG[mb]
            P = acc(0, mb)
            k.e(f"v_cvt_pk_bf16_f32 v{stg}, v{P}, v{P + 1}")
            k.e(f"v_cvt_pk_bf16_f32 v{stg + 1}, v{P + 2}, v{P + 3}")
            so = "0" if mb == 0 else f"s{S_O1}"
            k.vmem(f"buffer_store_dwordx2 {r2(stg)}, v{V_VO2}, s[{S_OSRD}:{S_OSRD+3}], {so} offen")


def srd(k, sd, plo, phi, nbytes):
    k.e(f"s_mov_b32 s{sd}, s{plo}")
    k.e(f"s_and_b32 s{sd + 1}, s{phi}, 0xffff")
    k.e(f"s_mov_b32 s{sd + 2}, {nbytes}")
    k.e(f"s_mov_b32 s{sd + 3}, 0x20000")


def gen():
    k = K()
    k.e("s_cmp_ge_u32 s2, 256")
    k.e("s_cbranch_scc1 L_END")
    k.e("s_load_dwordx4 s[4:7], s[0:1], 0")
    k.e("s_load_dwordx4 s[8:11], s[0:1], 16")
    k.e("s_load_dwordx2 s[12:13], s[0:1], 40")
    T = V_T
    k.e(f"v_and_b32 v{V_LANE}, 63, v{V_TID}")
    k.e(f"v_lshrrev_b32 v{T[0]}, 6, v{V_TID}")
    k.e("s_nop 0")
    k.e(f"v_readfirstlane_b32 s{S_WAVE}, v{T[0]}")
    k.e("s_and_b32 s14, s2, 7")
    k.e("s_lshr_b32 s15, s2, 3")
    k.e(f"s_mul_i32 s{S_NC0}, s15, 144")
    k.e(f"s_lshl_b32 s{S_M0}, s14, 8")
    k.e(f"s_lshl_b32 s{S_T}, s{S_WAVE}, 5")
    k.e(f"s_add_u32 s{S_M0}, s{S_M0}, s{S_T}")
    k.e(f"s_mov_b32 s{S_A1}, {16 * XROW}")
    k.e(f"s_mov_b32 s{S_O1}, {16 * N * 2}")
    for d in range(1, 8):
        k.e(f"s_mov_b32 s{S_QD + d - 1}, {d * N * 4}")
    k.e(f"v_and_b32 v{T[1]}, 15, v{V_LANE}")
    k.e(f"v_lshrrev_b32 v{T[2]}, 4, v{V_LANE}")
    k.e(f"v_add_u32 v{T[3]}, s{S_M0}, v{T[1]}")
    k.e(f"v_mul_u32_u24 v{T[4]}, {XROW}, v{T[3]}")
    k.e(f"v_lshl_add_u32 v{V_VA}, v{T[2]}, 4, v{T[4]}")
    k.e(f"v_lshlrev_b32 v{T[4]}, 4, v{T[1]}")
    k.e(f"v_lshl_add_u32 v{V_VB}, v{T[2]}, 10, v{T[4]}")
    k.e(f"v_mul_u32_u24 v{T[4]}, {N}, v{T[3]}")
    k.e(f"v_add_u32 v{T[4]}, s{S_NC0}, v{T[4]}")
    k.e(f"v_lshl_add_u32 v{T[4]}, v{T[2]}, 3, v{T[4]}")
    k.e(f"v_lshlrev_b32 v{V_VO}, 1, v{T[4]}")
    k.e(f"v_and_b32 v{T[4]}, 32, v{V_LANE}")
    k.e(f"v_lshrrev_b32 v{T[5]}, 2, v{T[1]}")
    k.e(f"v_lshl_add_u32 v{T[4]}, v{T[5]}, 3, v{T[4]}")
    k.e(f"v_and_b32 v{T[5]}, 1, v{T[2]}")
    k.e(f"v_lshl_add_u32 v{T[4]}, v{T[5]}, 2, v{T[4]}")
    k.e(f"v_and_b32 v{T[5]}, 3, v{T[1]}")
    k.e(f"v_add_u32 v{T[4]}, v{T[4]}, v{T[5]}")
    k.e(f"v_add_u32 v{T[4]}, s{S_NC0}, v{T[4]}")
    k.e(f"v_lshlrev_b32 v{V_RG}, 1, v{T[4]}")
    k.e(f"s_mul_i32 s{S_T}, s{S_WAVE}, {8 * N}")
    k.e(f"v_add_u32 v{T[4]}, s{S_T}, v{T[4]}")
    k.e(f"v_lshlrev_b32 v{V_VQ}, 2, v{T[4]}")
    k.e(f"s_mul_i32 s{S_T}, s{S_WAVE}, 10240")
    k.e(f"v_lshlrev_b32 v{T[4]}, 4, v{V_LANE}")
    k.e(f"v_add_u32 v{V_VW}, s{S_T}, v{T[4]}")
    k.e("s_waitcnt lgkmcnt(0)")
    srd(k, S_XSRD, 4, 5, M * XROW)
    srd(k, S_QSRD, 6, 7, 57 * N * 4)
    srd(k, S_SSRD, 8, 9, N * 2)
    srd(k, S_ZSRD, 10, 11, N * 2)
    srd(k, S_OSRD, 12, 13, M * N * 2)
    sq0 = issue_dq_loads(k, 0, 0)
    sq1 = issue_dq_loads(k, 1, 1)
    seqA = []
    for s in range(NKS):
        row = []
        for mb in range(2):
            so = "0" if mb == 0 else f"s{S_A1}"
            row.append(k.vmem(f"buffer_load_dwordx4 {r4(afrag(mb, s))}, v{V_VA}, s[{S_XSRD}:{S_XSRD+3}], {so} offen offset:{64 * s}"))
        seqA.append(row)
    for op in dq_stream(0, sq0, False):
        op(k)
    k.wait_lg_all()
    k.e("s_barrier")
    V1 = dq_stream(1, sq1, False)
    V1 = [(lambda kk: kk.e(f"v_add_u32 v{V_VW}, {LDSBUF}, v{V_VW}"))] + V1
    phase(k, 0, V1, first=True, seqA=seqA)
    k.wait_lg_all()
    k.e("s_barrier")
    k.e(f"s_cmp_ge_u32 s{S_WAVE}, 2")
    k.e("s_cbranch_scc1 L_P1_NODQ")
    ka = k.fork()
    ka.e(f"v_and_b32 v{T[0]}, 15, v{V_TID}")
    ka.e(f"v_lshrrev_b32 v{T[1]}, 4, v{V_TID}")
    ka.e(f"v_add_u32 v{T[2]}, s{S_NC0}, v{T[0]}")
    ka.e(f"v_add_u32 v{T[2]}, 128, v{T[2]}")
    ka.e(f"v_lshlrev_b32 v{V_RG}, 1, v{T[2]}")
    ka.e(f"v_mul_u32_u24 v{T[3]}, {8 * N}, v{T[1]}")
    ka.e(f"v_add_u32 v{T[3]}, v{T[3]}, v{T[2]}")
    ka.e(f"v_lshlrev_b32 v{V_VQ}, 2, v{T[3]}")
    ka.e(f"v_mul_u32_u24 v{T[3]}, 10240, v{T[1]}")
    ka.e(f"v_lshl_add_u32 v{V_VW}, v{T[0]}, 4, v{T[3]}")
    sq2 = issue_dq_loads(ka, 0, 2)
    V2 = dq_stream(0, sq2, True)
    phase(ka, 1, V2)
    ka.e("s_branch L_P1_DONE")
    kb = k.fork()
    phase(kb, 1, None)
    k.out += ka.out
    k.label("L_P1_NODQ")
    k.out += kb.out
    k.label("L_P1_DONE")
    k.vm = max(ka.vm, kb.vm)
    k.lg = max(ka.lg, kb.lg)
    k.wait_lg_all()
    k.e("s_barrier")
    k.e(f"v_and_b32 v{T[0]}, 15, v{V_TID}")
    k.e(f"v_and_b32 v{T[1]}, 63, v{V_TID}")
    k.e(f"v_lshrrev_b32 v{T[1]}, 4, v{T[1]}")
    k.e(f"v_add_u32 v{T[0]}, s{S_M0}, v{T[0]}")
    k.e(f"v_mul_u32_u24 v{T[0]}, {N}, v{T[0]}")
    k.e(f"v_add_u32 v{T[0]}, s{S_NC0}, v{T[0]}")
    k.e(f"v_lshl_add_u32 v{T[0]}, v{T[1]}, 2, v{T[0]}")
    k.e(f"v_add_u32 v{T[0]}, 128, v{T[0]}")
    k.e(f"v_lshlrev_b32 v{V_VO2}, 1, v{T[0]}")
    phase(k, 2, None)
    k.label("L_END")
    k.e("s_endpgm")
    return k


HEADER = open("standalone__weight_only_int_gptq__prompt.s.ref").read()


def main():
    k = gen()
    lines = HEADER.split("\n")
    out = []
    for ln in lines:
        if ln.startswith("; @launch"):
            out.append(f"; @launch grid=(256,1,1) block=(512,1,1) lds={LDS_TOTAL}")
            continue
        out.append(ln)
        if ln.startswith("standalone__weight_only_int_gptq__prompt_kernel:"):
            out += k.out
            break
    idx = lines.index("s_endpgm")
    out += lines[idx + 1:]
    open("standalone__weight_only_int_gptq__prompt.s", "w").write("\n".join(out))


if __name__ == "__main__":
    main()
```

```python
import sys
DEBUG = len(sys.argv) > 1 and sys.argv[1] == "debug"
OUTFILE = "dbg.s" if DEBUG else "standalone__weight_only_int_gptq__prompt.s"

M, KD, N = 2048, 570, 4608
XROW = KD * 2
DBG_WG = int(sys.argv[2]) if len(sys.argv) > 2 else 0
DBG_WAVE = int(sys.argv[3]) if len(sys.argv) > 3 else 0
NKS = 18
LDSBUF = 81920
LDS_TOTAL = 2 * LDSBUF

V_TID = 0
V_T = [16, 17, 18, 19, 20, 21, 22, 23]
V_STG = [8, 12]
V_LANE = 1
V_VA = 2
V_VB = 3
V_VW = 4
V_VQ = 5
V_VO = 6
V_VS = 7
V_VBA = 24
V_VBB = 25
V_RG = 26
V_VO2 = 27
CTX = [dict(q=28, s=36, zs=37, s2=38, zs2=39),
       dict(q=40, s=48, zs=49, s2=50, zs2=51)]
V_BF = 52
V_ACC = 84
V_A = 116


def layout():
    global V_BF, V_ACC, V_A
    V_A = 256 - 144
    V_ACC = V_A - 32
    V_BF = V_ACC - 32
    global CTX, V_VBA, V_VBB, V_RG, V_VO2
    CTX = [dict(q=24, s=32, zs=33, s2=34, zs2=35),
           dict(q=36, s=44, zs=45, s2=46, zs2=47)]
    V_VBA = 1
    V_VBB = 2
    V_RG = 7
    V_VO2 = 6


layout()


def afrag(mb, s):
    return V_A + (s * 2 + mb) * 4


def acc(nb, mb):
    return V_ACC + (nb * 2 + mb) * 4


def bfrag(t, nb):
    return V_BF + t * 16 + nb * 4


def r4(b):
    return f"v[{b}:{b + 3}]"


def r2(b):
    return f"v[{b}:{b + 1}]"


S_XSRD = 16
S_QSRD = 20
S_SSRD = 24
S_ZSRD = 28
S_OSRD = 32
S_A1 = 36
S_O1 = 37
S_QD = 38
S_WAVE = 46
S_M0 = 47
S_NC0 = 48
S_T = 49
S_T2 = 50


class K:
    def __init__(self):
        self.out = []
        self.vm = 0
        self.lg = 0
        self.vm_done = -1
        self.lg_done = -1

    def e(self, s):
        self.out.append("    " + s)

    def label(self, s):
        self.out.append(s + ":")

    def c(self, s):
        self.out.append("    ; " + s)

    def vmem(self, s):
        self.e(s)
        self.vm += 1
        return self.vm - 1

    def lds(self, s):
        self.e(s)
        self.lg += 1
        return self.lg - 1

    def wait_vm(self, seq):
        if seq <= self.vm_done:
            return
        n = min(self.vm - 1 - seq, 63)
        self.e(f"s_waitcnt vmcnt({n})")
        self.vm_done = max(self.vm_done, self.vm - 1 - n)

    def wait_lg(self, seq):
        if seq <= self.lg_done:
            return
        n = min(self.lg - 1 - seq, 15)
        self.e(f"s_waitcnt lgkmcnt({n})")
        self.lg_done = max(self.lg_done, self.lg - 1 - n)

    def wait_lg_all(self):
        self.e("s_waitcnt lgkmcnt(0)")
        self.lg_done = self.lg - 1

    def stamp(self, i):
        if not DEBUG:
            return
        self.e(f"s_memtime s[{64 + 2 * i}:{65 + 2 * i}]")
        self.e("s_waitcnt lgkmcnt(0)")
        self.lg_done = self.lg - 1

    def fork(self):
        k = K()
        k.vm, k.lg, k.vm_done, k.lg_done = self.vm, self.lg, self.vm_done, self.lg_done
        return k


def issue_dq_loads(k, ctx, p, nrows=8):
    c = CTX[ctx]
    off = 128 * p if p < 2 else 0
    qoff = 256 * p if p < 2 else 0
    k.vmem(f"buffer_load_ushort v{c['s']}, v{V_RG}, s[{S_SSRD}:{S_SSRD+3}], 0 offen offset:{off}")
    k.vmem(f"buffer_load_ushort v{c['zs']}, v{V_RG}, s[{S_ZSRD}:{S_ZSRD+3}], 0 offen offset:{off}")
    seq = None
    for d in range(nrows):
        so = "0" if d == 0 else f"s{S_QD + d - 1}"
        seq = k.vmem(f"buffer_load_dword v{c['q'] + d}, v{V_VQ}, s[{S_QSRD}:{S_QSRD+3}], {so} offen offset:{qoff}")
    return seq


def dq_stream(ctx, last_seq, rg_is_lane_based):
    c = CTX[ctx]
    V = []
    V.append(lambda k: k.wait_vm(last_seq))
    V.append(lambda k: k.e(f"v_lshlrev_b32 v{c['s']}, 16, v{c['s']}"))
    V.append(lambda k: k.e(f"v_lshlrev_b32 v{c['zs']}, 16, v{c['zs']}"))
    V.append(lambda k: k.e(f"v_mul_f32 v{c['zs']}, v{c['zs']}, v{c['s']}"))
    if rg_is_lane_based:
        V.append(lambda k: k.e(f"v_lshrrev_b32 v{V_T[0]}, 4, v{V_TID}"))
        V.append(lambda k: k.e(f"v_cmp_ne_u32 vcc, 7, v{V_T[0]}"))
    else:
        V.append(lambda k: k.e(f"v_mov_b32 v{V_T[0]}, s{S_WAVE}"))
        V.append(lambda k: k.e(f"v_cmp_ne_u32 vcc, 7, v{V_T[0]}"))
    V.append(lambda k: k.e("s_nop 1"))
    V.append(lambda k: k.e(f"v_cndmask_b32 v{c['s2']}, 0, v{c['s']}, vcc"))
    V.append(lambda k: k.e(f"v_cndmask_b32 v{c['zs2']}, 0, v{c['zs']}, vcc"))
    for t0 in range(0, 80, 4):
        tm = [V_T[(t0 // 4 % 2) * 4 + i] for i in range(4)]
        for i in range(4):
            t = t0 + i
            d, f = divmod(t, 10)
            V.append(lambda k, i=i, d=d, f=f, tm=tm: k.e(f"v_bfe_u32 v{tm[i]}, v{c['q'] + d}, {3 * f}, 3"))
        for i in range(4):
            V.append(lambda k, i=i, tm=tm: k.e(f"v_cvt_f32_u32 v{tm[i]}, v{tm[i]}"))
        for i in range(4):
            t = t0 + i
            d = t // 10
            sr, zr = (c['s'], c['zs']) if d == 0 else (c['s2'], c['zs2'])
            V.append(lambda k, i=i, tm=tm, sr=sr, zr=zr: k.e(f"v_fma_f32 v{tm[i]}, v{tm[i]}, v{sr}, -v{zr}"))
        chunk, pos = divmod(t0, 8)
        stg = V_STG[chunk % 2]
        for h in range(2):
            V.append(lambda k, h=h, tm=tm, stg=stg, pos=pos:
                     k.e(f"v_cvt_pk_bf16_f32 v{stg + pos // 2 + h}, v{tm[2 * h]}, v{tm[2 * h + 1]}"))
        if pos == 4:
            V.append(lambda k, stg=stg, chunk=chunk:
                     k.lds(f"ds_write_b128 v{V_VW}, {r4(stg)} offset:{chunk * 1024}"))
    return V


def phase(k, p, V, first=False, seqA=None):
    nblk = 4 if p < 2 else 1
    bufbase = (p & 1) * LDSBUF
    k.c(f"---- phase {p} ----")
    k.e(f"v_add_u32 v{V_VBA}, {bufbase}, v{V_VB}")
    k.e(f"v_add_u32 v{V_VBB}, {bufbase + 9 * 4096}, v{V_VB}")

    def reads(s):
        seqs = []
        for nb in range(nblk):
            if s < 9:
                base, off = V_VBA, s * 4096 + nb * 256
            else:
                base, off = V_VBB, (s - 9) * 4096 + nb * 256
            seqs.append(k.lds(f"ds_read_b128 {r4(bfrag(s & 1, nb))}, v{base} offset:{off}"))
        return seqs

    nm_total = NKS * nblk * 2
    m_start = nblk * 2 * 1
    m_end = nm_total - nblk * 2
    vi = 0
    mcount = 0
    rs = reads(0)
    for s in range(NKS):
        k.wait_lg(rs[-1])
        if first:
            k.wait_vm(seqA[s][1])
            if s == NKS - 1:
                k.e(f"v_and_b32 v{V_T[0]}, 63, v{V_TID}")
                k.e(f"v_cmp_gt_u32 vcc, 48, v{V_T[0]}")
                k.e("s_nop 1")
                for mb in range(2):
                    for j in range(1, 4):
                        a = afrag(mb, s) + j
                        k.e(f"v_cndmask_b32 v{a}, 0, v{a}, vcc")
                k.e("s_nop 1")
        if s < NKS - 1:
            rs = reads(s + 1)
        for nb in range(nblk):
            for mb in range(2):
                cop = "0" if s == 0 else r4(acc(nb, mb))
                k.e(f"v_mfma_f32_16x16x32_bf16 {r4(acc(nb, mb))}, {r4(bfrag(s & 1, nb))}, {r4(afrag(mb, s))}, {cop}")
                mcount += 1
                if V and mcount > m_start:
                    frac = min(1.0, (mcount - m_start) / float(m_end - m_start))
                    target = int(len(V) * frac + 0.999)
                    while vi < target:
                        V[vi](k)
                        vi += 1
    while V and vi < len(V):
        V[vi](k)
        vi += 1
    k.e("s_nop 7")
    k.e("s_nop 1")
    if p < 2:
        si = 0
        for mb in range(2):
            for pp in range(2):
                stg = [V_STG[0], V_STG[1], V_T[0], V_T[4]][si % 4]
                si += 1
                P, Q = acc(2 * pp, mb), acc(2 * pp + 1, mb)
                k.e(f"v_cvt_pk_bf16_f32 v{stg}, v{P}, v{P + 1}")
                k.e(f"v_cvt_pk_bf16_f32 v{stg + 1}, v{P + 2}, v{P + 3}")
                k.e(f"v_cvt_pk_bf16_f32 v{stg + 2}, v{Q}, v{Q + 1}")
                k.e(f"v_cvt_pk_bf16_f32 v{stg + 3}, v{Q + 2}, v{Q + 3}")
                so = "0" if mb == 0 else f"s{S_O1}"
                k.vmem(f"buffer_store_dwordx4 {r4(stg)}, v{V_VO}, s[{S_OSRD}:{S_OSRD+3}], {so} offen offset:{128 * p + 64 * pp}")
    else:
        for mb in range(2):
            stg = V_STG[mb]
            P = acc(0, mb)
            k.e(f"v_cvt_pk_bf16_f32 v{stg}, v{P}, v{P + 1}")
            k.e(f"v_cvt_pk_bf16_f32 v{stg + 1}, v{P + 2}, v{P + 3}")
            so = "0" if mb == 0 else f"s{S_O1}"
            k.vmem(f"buffer_store_dwordx2 {r2(stg)}, v{V_VO2}, s[{S_OSRD}:{S_OSRD+3}], {so} offen")


def srd(k, sd, plo, phi, nbytes):
    k.e(f"s_mov_b32 s{sd}, s{plo}")
    k.e(f"s_and_b32 s{sd + 1}, s{phi}, 0xffff")
    k.e(f"s_mov_b32 s{sd + 2}, {nbytes}")
    k.e(f"s_mov_b32 s{sd + 3}, 0x20000")


def gen():
    k = K()
    k.e("s_cmp_ge_u32 s2, 256")
    k.e("s_cbranch_scc1 L_END")
    k.e("s_load_dwordx4 s[4:7], s[0:1], 0")
    k.e("s_load_dwordx4 s[8:11], s[0:1], 16")
    k.e("s_load_dwordx2 s[12:13], s[0:1], 40")
    if DEBUG:
        k.e("s_load_dwordx2 s[60:61], s[0:1], 48")
    k.stamp(0)
    T = V_T
    k.e(f"v_and_b32 v{V_LANE}, 63, v{V_TID}")
    k.e(f"v_lshrrev_b32 v{T[0]}, 6, v{V_TID}")
    k.e("s_nop 0")
    k.e(f"v_readfirstlane_b32 s{S_WAVE}, v{T[0]}")
    k.e("s_and_b32 s14, s2, 7")
    k.e("s_lshr_b32 s15, s2, 3")
    k.e(f"s_mul_i32 s{S_NC0}, s15, 144")
    k.e(f"s_lshl_b32 s{S_M0}, s14, 8")
    k.e(f"s_lshl_b32 s{S_T}, s{S_WAVE}, 5")
    k.e(f"s_add_u32 s{S_M0}, s{S_M0}, s{S_T}")
    k.e(f"s_mov_b32 s{S_A1}, {16 * XROW}")
    k.e(f"s_mov_b32 s{S_O1}, {16 * N * 2}")
    for d in range(1, 8):
        k.e(f"s_mov_b32 s{S_QD + d - 1}, {d * N * 4}")
    k.e(f"v_and_b32 v{T[1]}, 15, v{V_LANE}")
    k.e(f"v_lshrrev_b32 v{T[2]}, 4, v{V_LANE}")
    k.e(f"v_add_u32 v{T[3]}, s{S_M0}, v{T[1]}")
    k.e(f"v_mul_u32_u24 v{T[4]}, {XROW}, v{T[3]}")
    k.e(f"v_lshl_add_u32 v{V_VA}, v{T[2]}, 4, v{T[4]}")
    k.e(f"v_lshlrev_b32 v{T[4]}, 4, v{T[1]}")
    k.e(f"v_lshl_add_u32 v{V_VB}, v{T[2]}, 10, v{T[4]}")
    k.e(f"v_mul_u32_u24 v{T[4]}, {N}, v{T[3]}")
    k.e(f"v_add_u32 v{T[4]}, s{S_NC0}, v{T[4]}")
    k.e(f"v_lshl_add_u32 v{T[4]}, v{T[2]}, 3, v{T[4]}")
    k.e(f"v_lshlrev_b32 v{V_VO}, 1, v{T[4]}")
    k.e(f"v_and_b32 v{T[4]}, 32, v{V_LANE}")
    k.e(f"v_lshrrev_b32 v{T[5]}, 2, v{T[1]}")
    k.e(f"v_lshl_add_u32 v{T[4]}, v{T[5]}, 3, v{T[4]}")
    k.e(f"v_and_b32 v{T[5]}, 1, v{T[2]}")
    k.e(f"v_lshl_add_u32 v{T[4]}, v{T[5]}, 2, v{T[4]}")
    k.e(f"v_and_b32 v{T[5]}, 3, v{T[1]}")
    k.e(f"v_add_u32 v{T[4]}, v{T[4]}, v{T[5]}")
    k.e(f"v_add_u32 v{T[4]}, s{S_NC0}, v{T[4]}")
    k.e(f"v_lshlrev_b32 v{V_RG}, 1, v{T[4]}")
    k.e(f"s_mul_i32 s{S_T}, s{S_WAVE}, {8 * N}")
    k.e(f"v_add_u32 v{T[4]}, s{S_T}, v{T[4]}")
    k.e(f"v_lshlrev_b32 v{V_VQ}, 2, v{T[4]}")
    k.e(f"s_mul_i32 s{S_T}, s{S_WAVE}, 10240")
    k.e(f"v_lshlrev_b32 v{T[4]}, 4, v{V_LANE}")
    k.e(f"v_add_u32 v{V_VW}, s{S_T}, v{T[4]}")
    k.e("s_waitcnt lgkmcnt(0)")
    srd(k, S_XSRD, 4, 5, M * XROW)
    srd(k, S_QSRD, 6, 7, 57 * N * 4)
    srd(k, S_SSRD, 8, 9, N * 2)
    srd(k, S_ZSRD, 10, 11, N * 2)
    srd(k, S_OSRD, 12, 13, M * N * 2)
    sq0 = issue_dq_loads(k, 0, 0)
    sq1 = issue_dq_loads(k, 1, 1)
    seqA = []
    for s in range(NKS):
        row = []
        for mb in range(2):
            so = "0" if mb == 0 else f"s{S_A1}"
            row.append(k.vmem(f"buffer_load_dwordx4 {r4(afrag(mb, s))}, v{V_VA}, s[{S_XSRD}:{S_XSRD+3}], {so} offen offset:{64 * s}"))
        seqA.append(row)
    k.stamp(1)
    dq0 = dq_stream(0, sq0, False)
    dq0[0](k)
    k.stamp(2)
    for op in dq0[1:]:
        op(k)
    k.wait_lg_all()
    k.stamp(3)
    k.e("s_barrier")
    k.stamp(4)
    V1 = dq_stream(1, sq1, False)
    V1 = [(lambda kk: kk.e(f"v_add_u32 v{V_VW}, {LDSBUF}, v{V_VW}"))] + V1
    phase(k, 0, V1, first=True, seqA=seqA)
    k.wait_lg_all()
    k.stamp(5)
    k.e("s_barrier")
    k.e(f"s_cmp_ge_u32 s{S_WAVE}, 2")
    k.e("s_cbranch_scc1 L_P1_NODQ")
    ka = k.fork()
    ka.e(f"v_and_b32 v{T[0]}, 15, v{V_TID}")
    ka.e(f"v_lshrrev_b32 v{T[1]}, 4, v{V_TID}")
    ka.e(f"v_add_u32 v{T[2]}, s{S_NC0}, v{T[0]}")
    ka.e(f"v_add_u32 v{T[2]}, 128, v{T[2]}")
    ka.e(f"v_lshlrev_b32 v{V_RG}, 1, v{T[2]}")
    ka.e(f"v_mul_u32_u24 v{T[3]}, {8 * N}, v{T[1]}")
    ka.e(f"v_add_u32 v{T[3]}, v{T[3]}, v{T[2]}")
    ka.e(f"v_lshlrev_b32 v{V_VQ}, 2, v{T[3]}")
    ka.e(f"v_mul_u32_u24 v{T[3]}, 10240, v{T[1]}")
    ka.e(f"v_lshl_add_u32 v{V_VW}, v{T[0]}, 4, v{T[3]}")
    sq2 = issue_dq_loads(ka, 0, 2)
    V2 = dq_stream(0, sq2, True)
    phase(ka, 1, V2)
    ka.e("s_branch L_P1_DONE")
    kb = k.fork()
    phase(kb, 1, None)
    k.out += ka.out
    k.label("L_P1_NODQ")
    k.out += kb.out
    k.label("L_P1_DONE")
    k.vm = max(ka.vm, kb.vm)
    k.lg = max(ka.lg, kb.lg)
    k.wait_lg_all()
    k.stamp(6)
    k.e("s_barrier")
    k.e(f"v_and_b32 v{T[0]}, 15, v{V_TID}")
    k.e(f"v_and_b32 v{T[1]}, 63, v{V_TID}")
    k.e(f"v_lshrrev_b32 v{T[1]}, 4, v{T[1]}")
    k.e(f"v_add_u32 v{T[0]}, s{S_M0}, v{T[0]}")
    k.e(f"v_mul_u32_u24 v{T[0]}, {N}, v{T[0]}")
    k.e(f"v_add_u32 v{T[0]}, s{S_NC0}, v{T[0]}")
    k.e(f"v_lshl_add_u32 v{T[0]}, v{T[1]}, 2, v{T[0]}")
    k.e(f"v_add_u32 v{T[0]}, 128, v{T[0]}")
    k.e(f"v_lshlrev_b32 v{V_VO2}, 1, v{T[0]}")
    phase(k, 2, None)
    k.stamp(7)
    if DEBUG:
        k.e("s_waitcnt vmcnt(0)")
        k.stamp(8)
        k.e("s_mov_b32 s62, 256")
        k.e("s_mov_b32 s63, 0x20000")
        k.e("s_and_b32 s61, s61, 0xffff")
        k.e(f"s_cmp_eq_u32 s2, {DBG_WG}")
        k.e("s_cbranch_scc0 L_END")
        k.e(f"s_cmp_eq_u32 s{S_WAVE}, {DBG_WAVE}")
        k.e("s_cbranch_scc0 L_END")
        k.e("s_mov_b64 exec, 1")
        for i in range(9):
            k.e(f"s_sub_u32 s{64 + 2 * i}, s{64 + 2 * i}, s64") if i else None
        for i in range(1, 9):
            k.e(f"v_mov_b32 v16, s{64 + 2 * i}")
            k.e(f"v_mov_b32 v17, {4 * i}")
            k.e("buffer_store_dword v16, v17, s[60:63], 0 offen")
            k.e("s_waitcnt vmcnt(0)")
    k.label("L_END")
    k.e("s_endpgm")
    return k


HEADER = open("standalone__weight_only_int_gptq__prompt.s.ref").read()


def main():
    k = gen()
    lines = HEADER.split("\n")
    out = []
    for ln in lines:
        if ln.startswith("; @launch"):
            out.append(f"; @launch grid=(256,1,1) block=(512,1,1) lds={LDS_TOTAL}")
            continue
        out.append(ln)
        if ln.startswith("standalone__weight_only_int_gptq__prompt_kernel:"):
            out += k.out
            break
    idx = lines.index("s_endpgm")
    out += lines[idx + 1:]
    open(OUTFILE, "w").write("\n".join(out))


if __name__ == "__main__":
    main()
```

```python
import sys
DEBUG = len(sys.argv) > 1 and sys.argv[1] == "debug"
OUTFILE = "dbg.s" if DEBUG else "standalone__weight_only_int_gptq__prompt.s"
DBG_WG = int(sys.argv[2]) if len(sys.argv) > 2 else 0
DBG_WAVE = int(sys.argv[3]) if len(sys.argv) > 3 else 0

M, KD, N = 2048, 570, 4608
XROW = KD * 2
NKS = 18
PW = 48
NBLK = 3
CH = PW * 16
LDSBUF = 72 * CH
STG0 = 2 * LDSBUF
STGW = 6144
NBUFA = 3
LDS_TOTAL = STG0 + 8 * STGW

V_TID = 0
V_VBA, V_VBB = 1, 2
V_VB = 3
V_VW = 4
V_VQ = 5
V_VO = 6
V_VS = 7
V_STG = [8, 12]
V_T = [16, 17, 18, 19, 20, 21, 22, 23]
V_VO2 = 24
V_DMA = [25, 26]
V_AR = 27
V_RGM = 28
CTX = [dict(q=40, s=48, zs=49, s2=50, zs2=51),
       dict(q=52, s=60, zs=61, s2=62, zs2=63)]
V_BF = 64
V_ACC = 88
V_A = 112


def afrag(mb, s):
    return V_A + (s * 2 + mb) * 4


def acc(nb, mb):
    return V_ACC + (nb * 2 + mb) * 4


def bfrag(t, nb):
    return V_BF + t * 12 + nb * 4


def r4(b):
    return f"v[{b}:{b + 3}]"


def r2(b):
    return f"v[{b}:{b + 1}]"


S_XSRD, S_QSRD, S_SSRD, S_ZSRD, S_OSRD = 16, 20, 24, 28, 32
S_O1 = 37
S_QD = 38
S_WAVE, S_M0, S_NC0, S_T, S_T2 = 46, 47, 48, 49, 50
S_STGB = 51
S_EX = 52
S_DOFF = 54
S_VCC2 = 56


class K:
    def __init__(self):
        self.out = []
        self.vm = 0
        self.lg = 0
        self.vm_done = -1
        self.lg_done = -1

    def e(self, s):
        self.out.append("    " + s)

    def label(self, s):
        self.out.append(s + ":")

    def c(self, s):
        self.out.append("    ; " + s)

    def vmem(self, s):
        self.e(s)
        self.vm += 1
        return self.vm - 1

    def lds(self, s):
        self.e(s)
        self.lg += 1
        return self.lg - 1

    def wait_vm(self, seq):
        if seq <= self.vm_done:
            return
        n = min(self.vm - 1 - seq, 63)
        self.e(f"s_waitcnt vmcnt({n})")
        self.vm_done = max(self.vm_done, self.vm - 1 - n)

    def wait_lg(self, seq):
        if seq <= self.lg_done:
            return
        n = min(self.lg - 1 - seq, 15)
        self.e(f"s_waitcnt lgkmcnt({n})")
        self.lg_done = max(self.lg_done, self.lg - 1 - n)

    def wait_lg_all(self):
        self.e("s_waitcnt lgkmcnt(0)")
        self.lg_done = self.lg - 1

    def stamp(self, i):
        if not DEBUG:
            return
        self.e(f"s_memtime s[{64 + 2 * i}:{65 + 2 * i}]")
        self.e("s_waitcnt lgkmcnt(0)")
        self.lg_done = self.lg - 1

    def fork(self):
        k = K()
        k.vm, k.lg, k.vm_done, k.lg_done = self.vm, self.lg, self.vm_done, self.lg_done
        return k


def issue_dq_loads(k, ctx, p):
    c = CTX[ctx]
    k.vmem(f"buffer_load_ushort v{c['s']}, v{V_VS}, s[{S_SSRD}:{S_SSRD+3}], 0 offen offset:{2 * PW * p}")
    k.vmem(f"buffer_load_ushort v{c['zs']}, v{V_VS}, s[{S_ZSRD}:{S_ZSRD+3}], 0 offen offset:{2 * PW * p}")
    seq = None
    for d in range(8):
        so = "0" if d == 0 else f"s{S_QD + d - 1}"
        seq = k.vmem(f"buffer_load_dword v{c['q'] + d}, v{V_VQ}, s[{S_QSRD}:{S_QSRD+3}], {so} offen offset:{4 * PW * p}")
    return seq


def dq_stream(ctx, last_seq, bufbase):
    c = CTX[ctx]
    V = []
    V.append(lambda k: k.wait_vm(last_seq))
    V.append(lambda k: k.e(f"v_lshlrev_b32 v{c['s']}, 16, v{c['s']}"))
    V.append(lambda k: k.e(f"v_lshlrev_b32 v{c['zs']}, 16, v{c['zs']}"))
    V.append(lambda k: k.e(f"v_mul_f32 v{c['zs']}, v{c['zs']}, v{c['s']}"))
    V.append(lambda k: k.e(f"v_cndmask_b32 v{c['s2']}, 0, v{c['s']}, s[{S_VCC2}:{S_VCC2+1}]"))
    V.append(lambda k: k.e(f"v_cndmask_b32 v{c['zs2']}, 0, v{c['zs']}, s[{S_VCC2}:{S_VCC2+1}]"))
    for t0 in range(0, 80, 4):
        tm = [V_T[(t0 // 4 % 2) * 4 + i] for i in range(4)]
        for i in range(4):
            d, f = divmod(t0 + i, 10)
            V.append(lambda k, i=i, d=d, f=f, tm=tm: k.e(f"v_bfe_u32 v{tm[i]}, v{c['q'] + d}, {3 * f}, 3"))
        for i in range(4):
            V.append(lambda k, i=i, tm=tm: k.e(f"v_cvt_f32_u32 v{tm[i]}, v{tm[i]}"))
        for i in range(4):
            d = (t0 + i) // 10
            sr, zr = (c['s'], c['zs']) if d == 0 else (c['s2'], c['zs2'])
            V.append(lambda k, i=i, tm=tm, sr=sr, zr=zr: k.e(f"v_fma_f32 v{tm[i]}, v{tm[i]}, v{sr}, -v{zr}"))
        chunk, pos = divmod(t0, 8)
        stg = V_STG[chunk % 2]
        for h in range(2):
            V.append(lambda k, h=h, tm=tm, stg=stg, pos=pos:
                     k.e(f"v_cvt_pk_bf16_f32 v{stg + pos // 2 + h}, v{tm[2 * h]}, v{tm[2 * h + 1]}"))
        if pos == 4:
            def wr(k, stg=stg, chunk=chunk):
                if chunk >= 2:
                    k.e(f"s_and_saveexec_b64 s[{S_EX}:{S_EX+1}], s[{S_VCC2}:{S_VCC2+1}]")
                k.lds(f"ds_write_b128 v{V_VW}, {r4(stg)} offset:{bufbase + chunk * CH}")
                if chunk >= 2:
                    k.e(f"s_mov_b64 exec, s[{S_EX}:{S_EX+1}]")
            V.append(wr)
    return V


class AStage:
    def __init__(self):
        self.dma_seq = {}
        self.rd_seq = {}

    def dma(self, k, n):
        t, mb = n // 2, n % 2
        b = n % NBUFA
        for h in range(2):
            k.e(f"s_add_u32 s{S_T}, s{S_STGB}, {b * 2048 + h * 1024}")
            k.e(f"s_mov_b32 m0, s{S_T}")
            k.e(f"s_mov_b32 s{S_DOFF}, {(mb * 16 + h * 8) * XROW + 128 * t}")
            self.dma_seq[n] = k.vmem(f"buffer_load_dwordx4 v{V_DMA[h]}, s[{S_XSRD}:{S_XSRD+3}], s{S_DOFF} offen lds")

    def read(self, k, n):
        t, mb = n // 2, n % 2
        b = n % NBUFA
        k.wait_vm(self.dma_seq[n])
        for kk in range(2):
            if kk == 0:
                self.rd_seq[n] = k.lds(f"ds_read_b128 {r4(afrag(mb, 2 * t + kk))}, v{V_AR} offset:{b * 2048}")
            else:
                self.rd_seq[n] = k.lds(f"ds_read_b128 {r4(afrag(mb, 2 * t + kk))}, v{V_RGM} offset:{b * 2048}")


def phase(k, p, V, first=False, ast=None):
    bufbase = (p & 1) * LDSBUF
    k.c(f"---- phase {p} ----")
    k.e(f"v_add_u32 v{V_VBA}, {bufbase}, v{V_VB}")
    k.e(f"v_add_u32 v{V_VBB}, {bufbase + 9 * 4 * CH}, v{V_VB}")

    def reads(s):
        seqs = []
        for nb in range(NBLK):
            if s < 9:
                base, off = V_VBA, s * 4 * CH + nb * 256
            else:
                base, off = V_VBB, (s - 9) * 4 * CH + nb * 256
            seqs.append(k.lds(f"ds_read_b128 {r4(bfrag(s & 1, nb))}, v{base} offset:{off}"))
        return seqs

    nm_total = NKS * NBLK * 2
    m_start = NBLK * 2
    m_end = nm_total - NBLK * 2
    vi = 0
    mcount = 0
    rs = reads(0)
    for s in range(NKS):
        if first:
            if s % 2 == 0:
                t = s // 2
                for n in (2 * t, 2 * t + 1):
                    if n not in ast.rd_seq:
                        ast.read(k, n)
                        if n + NBUFA < 2 * 9:
                            k.wait_lg(ast.rd_seq[n])
                            ast.dma(k, n + NBUFA)
                k.wait_lg(ast.rd_seq[2 * t + 1])
        k.wait_lg(rs[-1])
        if first and s == NKS - 1:
            k.e(f"v_and_b32 v{V_T[0]}, 63, v{V_TID}")
            k.e(f"v_cmp_gt_u32 vcc, 48, v{V_T[0]}")
            k.e("s_nop 1")
            for mb in range(2):
                for j in range(1, 4):
                    a = afrag(mb, s) + j
                    k.e(f"v_cndmask_b32 v{a}, 0, v{a}, vcc")
            k.e("s_nop 1")
        if s < NKS - 1:
            rs = reads(s + 1)
        for nb in range(NBLK):
            for mb in range(2):
                cop = "0" if s == 0 else r4(acc(nb, mb))
                k.e(f"v_mfma_f32_16x16x32_bf16 {r4(acc(nb, mb))}, {r4(bfrag(s & 1, nb))}, {r4(afrag(mb, s))}, {cop}")
                mcount += 1
                if V and mcount > m_start:
                    frac = min(1.0, (mcount - m_start) / float(m_end - m_start))
                    target = int(len(V) * frac + 0.999)
                    while vi < target:
                        V[vi](k)
                        vi += 1
    while V and vi < len(V):
        V[vi](k)
        vi += 1
    k.e("s_nop 7")
    k.e("s_nop 1")
    for mb in range(2):
        so = "0" if mb == 0 else f"s{S_O1}"
        stg = V_STG[mb]
        P, Q = acc(0, mb), acc(1, mb)
        k.e(f"v_cvt_pk_bf16_f32 v{stg}, v{P}, v{P + 1}")
        k.e(f"v_cvt_pk_bf16_f32 v{stg + 1}, v{P + 2}, v{P + 3}")
        k.e(f"v_cvt_pk_bf16_f32 v{stg + 2}, v{Q}, v{Q + 1}")
        k.e(f"v_cvt_pk_bf16_f32 v{stg + 3}, v{Q + 2}, v{Q + 3}")
        k.vmem(f"buffer_store_dwordx4 {r4(stg)}, v{V_VO}, s[{S_OSRD}:{S_OSRD+3}], {so} offen offset:{2 * PW * p}")
        stg2 = V_T[mb * 2]
        R = acc(2, mb)
        k.e(f"v_cvt_pk_bf16_f32 v{stg2}, v{R}, v{R + 1}")
        k.e(f"v_cvt_pk_bf16_f32 v{stg2 + 1}, v{R + 2}, v{R + 3}")
        k.vmem(f"buffer_store_dwordx2 {r2(stg2)}, v{V_VO2}, s[{S_OSRD}:{S_OSRD+3}], {so} offen offset:{2 * PW * p}")


def srd(k, sd, plo, phi, nbytes):
    k.e(f"s_mov_b32 s{sd}, s{plo}")
    k.e(f"s_and_b32 s{sd + 1}, s{phi}, 0xffff")
    k.e(f"s_mov_b32 s{sd + 2}, {nbytes}")
    k.e(f"s_mov_b32 s{sd + 3}, 0x20000")


def gen():
    k = K()
    T = V_T
    k.e("s_cmp_ge_u32 s2, 256")
    k.e("s_cbranch_scc1 L_END")
    k.e("s_load_dwordx4 s[4:7], s[0:1], 0")
    k.e("s_load_dwordx4 s[8:11], s[0:1], 16")
    k.e("s_load_dwordx2 s[12:13], s[0:1], 40")
    if DEBUG:
        k.e("s_load_dwordx2 s[60:61], s[0:1], 48")
    k.stamp(0)
    lane, i16, g = T[0], T[1], T[2]
    k.e(f"v_and_b32 v{lane}, 63, v{V_TID}")
    k.e(f"v_lshrrev_b32 v{T[3]}, 6, v{V_TID}")
    k.e("s_nop 0")
    k.e(f"v_readfirstlane_b32 s{S_WAVE}, v{T[3]}")
    k.e("s_and_b32 s14, s2, 7")
    k.e("s_lshr_b32 s15, s2, 3")
    k.e(f"s_mul_i32 s{S_NC0}, s15, 144")
    k.e(f"s_lshl_b32 s{S_M0}, s14, 8")
    k.e(f"s_lshl_b32 s{S_T}, s{S_WAVE}, 5")
    k.e(f"s_add_u32 s{S_M0}, s{S_M0}, s{S_T}")
    k.e(f"s_mov_b32 s{S_O1}, {16 * N * 2}")
    for d in range(1, 8):
        k.e(f"s_mov_b32 s{S_QD + d - 1}, {d * N * 4}")
    k.e(f"s_mul_i32 s{S_STGB}, s{S_WAVE}, {STGW}")
    k.e(f"s_add_u32 s{S_STGB}, s{S_STGB}, {STG0}")
    k.e(f"v_and_b32 v{i16}, 15, v{lane}")
    k.e(f"v_lshrrev_b32 v{g}, 4, v{lane}")
    k.e(f"v_lshlrev_b32 v{T[4]}, 4, v{i16}")
    k.e(f"v_mul_u32_u24 v{V_VB}, {CH}, v{g}")
    k.e(f"v_add_u32 v{V_VB}, v{V_VB}, v{T[4]}")
    k.e(f"v_add_u32 v{T[3]}, s{S_M0}, v{i16}")
    k.e(f"v_mul_u32_u24 v{T[4]}, {N}, v{T[3]}")
    k.e(f"v_add_u32 v{T[4]}, s{S_NC0}, v{T[4]}")
    k.e(f"v_lshl_add_u32 v{T[5]}, v{g}, 3, v{T[4]}")
    k.e(f"v_lshlrev_b32 v{V_VO}, 1, v{T[5]}")
    k.e(f"v_lshl_add_u32 v{T[5]}, v{g}, 2, v{T[4]}")
    k.e(f"v_add_u32 v{T[5]}, 32, v{T[5]}")
    k.e(f"v_lshlrev_b32 v{V_VO2}, 1, v{T[5]}")
    k.e(f"v_lshrrev_b32 v{T[4]}, 1, v{i16}")
    k.e(f"v_xor_b32 v{T[4]}, v{T[4]}, v{g}")
    k.e(f"v_lshlrev_b32 v{T[4]}, 4, v{T[4]}")
    k.e(f"v_lshl_add_u32 v{T[4]}, v{i16}, 7, v{T[4]}")
    k.e(f"v_add_u32 v{V_AR}, s{S_STGB}, v{T[4]}")
    k.e(f"v_xor_b32 v{V_RGM}, 64, v{V_AR}")
    for h in range(2):
        k.e(f"v_lshrrev_b32 v{T[4]}, 3, v{lane}")
        k.e(f"v_lshrrev_b32 v{T[5]}, 4, v{lane}")
        if h:
            k.e(f"v_xor_b32 v{T[5]}, 4, v{T[5]}")
        k.e(f"v_and_b32 v{T[6]}, 7, v{lane}")
        k.e(f"v_xor_b32 v{T[5]}, v{T[5]}, v{T[6]}")
        k.e(f"v_add_u32 v{T[4]}, s{S_M0}, v{T[4]}")
        k.e(f"v_mul_u32_u24 v{T[4]}, {XROW}, v{T[4]}")
        k.e(f"v_lshl_add_u32 v{V_DMA[h]}, v{T[5]}, 4, v{T[4]}")
    rg, slot = T[3], T[4]
    k.e(f"v_mul_u32_u24 v{rg}, 1366, v{V_TID}")
    k.e(f"v_lshrrev_b32 v{rg}, 16, v{rg}")
    k.e(f"v_mul_u32_u24 v{T[5]}, 48, v{rg}")
    k.e(f"v_sub_u32 v{slot}, v{V_TID}, v{T[5]}")
    k.e(f"v_cmp_ne_u32 s[{S_VCC2}:{S_VCC2+1}], 7, v{rg}")
    k.e(f"v_and_b32 v{T[5]}, 15, v{slot}")
    k.e(f"v_lshrrev_b32 v{T[5]}, 2, v{T[5]}")
    k.e(f"v_lshlrev_b32 v{T[5]}, 3, v{T[5]}")
    k.e(f"v_lshrrev_b32 v{T[6]}, 4, v{slot}")
    k.e(f"v_lshl_add_u32 v{T[5]}, v{T[6]}, 2, v{T[5]}")
    k.e(f"v_and_b32 v{T[6]}, 3, v{slot}")
    k.e(f"v_add_u32 v{T[5]}, v{T[5]}, v{T[6]}")
    k.e(f"v_cmp_gt_u32 vcc, 32, v{slot}")
    k.e("s_nop 1")
    k.e(f"v_cndmask_b32 v{T[5]}, v{slot}, v{T[5]}, vcc")
    k.e(f"v_add_u32 v{T[5]}, s{S_NC0}, v{T[5]}")
    k.e(f"v_lshlrev_b32 v{V_VS}, 1, v{T[5]}")
    k.e(f"v_mul_u32_u24 v{T[6]}, {8 * N}, v{rg}")
    k.e(f"v_add_u32 v{T[6]}, v{T[6]}, v{T[5]}")
    k.e(f"v_lshlrev_b32 v{V_VQ}, 2, v{T[6]}")
    k.e(f"v_mul_u32_u24 v{T[6]}, {10 * CH}, v{rg}")
    k.e(f"v_lshl_add_u32 v{V_VW}, v{slot}, 4, v{T[6]}")
    k.e("s_waitcnt lgkmcnt(0)")
    srd(k, S_XSRD, 4, 5, M * XROW)
    srd(k, S_QSRD, 6, 7, 57 * N * 4)
    srd(k, S_SSRD, 8, 9, N * 2)
    srd(k, S_ZSRD, 10, 11, N * 2)
    srd(k, S_OSRD, 12, 13, M * N * 2)

    def body(k, dq):
        ast = AStage()
        if dq:
            sq0 = issue_dq_loads(k, 0, 0)
            sq1 = issue_dq_loads(k, 1, 1)
        for n in range(NBUFA):
            ast.dma(k, n)
        k.stamp(1)
        if dq:
            for op in dq_stream(0, sq0, 0):
                op(k)
        k.wait_lg_all()
        k.stamp(3)
        k.e("s_barrier")
        k.stamp(4)
        phase(k, 0, dq_stream(1, sq1, LDSBUF) if dq else None, first=True, ast=ast)
        k.wait_lg_all()
        k.stamp(5)
        k.e("s_barrier")
        V2 = None
        if dq:
            sq2 = issue_dq_loads(k, 0, 2)
            V2 = dq_stream(0, sq2, 0)
        phase(k, 1, V2)
        k.wait_lg_all()
        k.stamp(6)
        k.e("s_barrier")
        phase(k, 2, None)
        k.stamp(7)

    k.e(f"s_cmp_ge_u32 s{S_WAVE}, 6")
    k.e("s_cbranch_scc1 L_NODQ")
    ka = k.fork()
    body(ka, True)
    ka.e("s_branch L_DONE")
    kb = k.fork()
    body(kb, False)
    k.out += ka.out
    k.label("L_NODQ")
    k.out += kb.out
    k.label("L_DONE")
    if DEBUG:
        k.e("s_waitcnt vmcnt(0)")
        k.stamp(8)
        k.e("s_mov_b32 s62, 256")
        k.e("s_mov_b32 s63, 0x20000")
        k.e("s_and_b32 s61, s61, 0xffff")
        k.e(f"s_cmp_eq_u32 s2, {DBG_WG}")
        k.e("s_cbranch_scc0 L_END")
        k.e(f"s_cmp_eq_u32 s{S_WAVE}, {DBG_WAVE}")
        k.e("s_cbranch_scc0 L_END")
        k.e("s_mov_b64 exec, 1")
        for i in range(1, 9):
            k.e(f"s_sub_u32 s{64 + 2 * i}, s{64 + 2 * i}, s64")
        for i in range(1, 9):
            k.e(f"v_mov_b32 v16, s{64 + 2 * i}")
            k.e(f"v_mov_b32 v17, {4 * i}")
            k.e("buffer_store_dword v16, v17, s[60:63], 0 offen")
            k.e("s_waitcnt vmcnt(0)")
    k.label("L_END")
    k.e("s_endpgm")
    return k


HEADER = open("standalone__weight_only_int_gptq__prompt.s.ref").read()


def main():
    for t in range(512):
        assert (t * 1366) >> 16 == t // 48
    k = gen()
    lines = HEADER.split("\n")
    out = []
    for ln in lines:
        if ln.startswith("; @launch"):
            out.append(f"; @launch grid=(256,1,1) block=(512,1,1) lds={LDS_TOTAL}")
            continue
        out.append(ln)
        if ln.startswith("standalone__weight_only_int_gptq__prompt_kernel:"):
            out += k.out
            break
    idx = lines.index("s_endpgm")
    out += lines[idx + 1:]
    open(OUTFILE, "w").write("\n".join(out))


if __name__ == "__main__":
    main()
```

```python
import sys
DEBUG = len(sys.argv) > 1 and sys.argv[1] == "debug"
OUTFILE = "dbg.s" if DEBUG else "standalone__weight_only_int_gptq__prompt.s"
DBG_WG = int(sys.argv[2]) if len(sys.argv) > 2 else 0
DBG_WAVE = int(sys.argv[3]) if len(sys.argv) > 3 else 0

import os
MAPM = int(os.environ.get("MAPM", "0"))
M, KD, N = 2048, 570, 4608
XROW = KD * 2
NKS = 18
PW = 48
NBLK = 3
CH = PW * 16
LDSBUF = 72 * CH
STG0 = 2 * LDSBUF
STGW = 6144
NBUFA = 3
LDS_TOTAL = STG0 + 8 * STGW

V_TID = 0
V_VBA, V_VBB = 1, 2
V_VB = 3
V_VW = 4
V_VQ = 5
V_VO = 6
V_VS = 7
V_STG = [8, 12]
V_T = [16, 17, 18, 19, 20, 21, 22, 23]
V_VO2 = 24
V_DMA = [25, 26]
V_AR = 27
V_RGM = 28
CTX = [dict(q=40, s=48, zs=49, s2=50, zs2=51),
       dict(q=52, s=60, zs=61, s2=62, zs2=63)]
V_BF = 64
V_ACC = 88
V_A = 112


def afrag(mb, s):
    return V_A + (s * 2 + mb) * 4


def acc(nb, mb):
    return V_ACC + (nb * 2 + mb) * 4


def bfrag(t, nb):
    return V_BF + t * 12 + nb * 4


def r4(b):
    return f"v[{b}:{b + 3}]"


def r2(b):
    return f"v[{b}:{b + 1}]"


S_XSRD, S_QSRD, S_SSRD, S_ZSRD, S_OSRD = 16, 20, 24, 28, 32
S_O1 = 37
S_QD = 38
S_WAVE, S_M0, S_NC0, S_T, S_T2 = 46, 47, 48, 49, 50
S_STGB = 51
S_EX = 52
S_DOFF = 54
S_VCC2 = 56


class K:
    def __init__(self):
        self.out = []
        self.vm = 0
        self.lg = 0
        self.vm_done = -1
        self.lg_done = -1

    def e(self, s):
        self.out.append("    " + s)

    def label(self, s):
        self.out.append(s + ":")

    def c(self, s):
        self.out.append("    ; " + s)

    def vmem(self, s):
        self.e(s)
        self.vm += 1
        return self.vm - 1

    def lds(self, s):
        self.e(s)
        self.lg += 1
        return self.lg - 1

    def wait_vm(self, seq):
        if seq <= self.vm_done:
            return
        n = min(self.vm - 1 - seq, 63)
        self.e(f"s_waitcnt vmcnt({n})")
        self.vm_done = max(self.vm_done, self.vm - 1 - n)

    def wait_lg(self, seq):
        if seq <= self.lg_done:
            return
        n = min(self.lg - 1 - seq, 15)
        self.e(f"s_waitcnt lgkmcnt({n})")
        self.lg_done = max(self.lg_done, self.lg - 1 - n)

    def wait_lg_all(self):
        self.e("s_waitcnt lgkmcnt(0)")
        self.lg_done = self.lg - 1

    def stamp(self, i):
        if not DEBUG:
            return
        self.e(f"s_memtime s[{64 + 2 * i}:{65 + 2 * i}]")
        self.e("s_waitcnt lgkmcnt(0)")
        self.lg_done = self.lg - 1

    def fork(self):
        k = K()
        k.vm, k.lg, k.vm_done, k.lg_done = self.vm, self.lg, self.vm_done, self.lg_done
        return k


def issue_dq_loads(k, ctx, p):
    c = CTX[ctx]
    k.vmem(f"buffer_load_ushort v{c['s']}, v{V_VS}, s[{S_SSRD}:{S_SSRD+3}], 0 offen offset:{2 * PW * p}")
    k.vmem(f"buffer_load_ushort v{c['zs']}, v{V_VS}, s[{S_ZSRD}:{S_ZSRD+3}], 0 offen offset:{2 * PW * p}")
    seq = None
    for d in range(8):
        so = "0" if d == 0 else f"s{S_QD + d - 1}"
        seq = k.vmem(f"buffer_load_dword v{c['q'] + d}, v{V_VQ}, s[{S_QSRD}:{S_QSRD+3}], {so} offen offset:{4 * PW * p}")
    return seq


def dq_stream(ctx, last_seq, bufbase):
    c = CTX[ctx]
    V = []
    V.append(lambda k: k.wait_vm(last_seq))
    V.append(lambda k: k.e(f"v_lshlrev_b32 v{c['s']}, 16, v{c['s']}"))
    V.append(lambda k: k.e(f"v_lshlrev_b32 v{c['zs']}, 16, v{c['zs']}"))
    V.append(lambda k: k.e(f"v_mul_f32 v{c['zs']}, v{c['zs']}, v{c['s']}"))
    V.append(lambda k: k.e(f"v_cndmask_b32 v{c['s2']}, 0, v{c['s']}, s[{S_VCC2}:{S_VCC2+1}]"))
    V.append(lambda k: k.e(f"v_cndmask_b32 v{c['zs2']}, 0, v{c['zs']}, s[{S_VCC2}:{S_VCC2+1}]"))
    for t0 in range(0, 80, 4):
        tm = [V_T[(t0 // 4 % 2) * 4 + i] for i in range(4)]
        for i in range(4):
            d, f = divmod(t0 + i, 10)
            V.append(lambda k, i=i, d=d, f=f, tm=tm: k.e(f"v_bfe_u32 v{tm[i]}, v{c['q'] + d}, {3 * f}, 3"))
        for i in range(4):
            V.append(lambda k, i=i, tm=tm: k.e(f"v_cvt_f32_u32 v{tm[i]}, v{tm[i]}"))
        for i in range(4):
            d = (t0 + i) // 10
            sr, zr = (c['s'], c['zs']) if d == 0 else (c['s2'], c['zs2'])
            V.append(lambda k, i=i, tm=tm, sr=sr, zr=zr: k.e(f"v_fma_f32 v{tm[i]}, v{tm[i]}, v{sr}, -v{zr}"))
        chunk, pos = divmod(t0, 8)
        stg = V_STG[chunk % 2]
        for h in range(2):
            V.append(lambda k, h=h, tm=tm, stg=stg, pos=pos:
                     k.e(f"v_cvt_pk_bf16_f32 v{stg + pos // 2 + h}, v{tm[2 * h]}, v{tm[2 * h + 1]}"))
        if pos == 4:
            def wr(k, stg=stg, chunk=chunk):
                if chunk >= 2:
                    k.e(f"s_and_saveexec_b64 s[{S_EX}:{S_EX+1}], s[{S_VCC2}:{S_VCC2+1}]")
                k.lds(f"ds_write_b128 v{V_VW}, {r4(stg)} offset:{bufbase + chunk * CH}")
                if chunk >= 2:
                    k.e(f"s_mov_b64 exec, s[{S_EX}:{S_EX+1}]")
            V.append(wr)
    return V


class AStage:
    def __init__(self):
        self.dma_seq = {}
        self.rd_seq = {}

    def dma(self, k, n):
        t, mb = n // 2, n % 2
        b = n % NBUFA
        for h in range(2):
            k.e(f"s_add_u32 s{S_T}, s{S_STGB}, {b * 2048 + h * 1024}")
            k.e(f"s_mov_b32 m0, s{S_T}")
            k.e(f"s_mov_b32 s{S_DOFF}, {(mb * 16 + h * 8) * XROW + 128 * t}")
            self.dma_seq[n] = k.vmem(f"buffer_load_dwordx4 v{V_DMA[h]}, s[{S_XSRD}:{S_XSRD+3}], s{S_DOFF} offen lds")

    def read(self, k, n):
        t, mb = n // 2, n % 2
        b = n % NBUFA
        k.wait_vm(self.dma_seq[n])
        for kk in range(2):
            if kk == 0:
                self.rd_seq[n] = k.lds(f"ds_read_b128 {r4(afrag(mb, 2 * t + kk))}, v{V_AR} offset:{b * 2048}")
            else:
                self.rd_seq[n] = k.lds(f"ds_read_b128 {r4(afrag(mb, 2 * t + kk))}, v{V_RGM} offset:{b * 2048}")


def phase(k, p, V, first=False, ast=None):
    bufbase = (p & 1) * LDSBUF
    k.c(f"---- phase {p} ----")
    k.e(f"v_add_u32 v{V_VBA}, {bufbase}, v{V_VB}")
    k.e(f"v_add_u32 v{V_VBB}, {bufbase + 9 * 4 * CH}, v{V_VB}")

    def reads(s):
        seqs = []
        for nb in range(NBLK):
            if s < 9:
                base, off = V_VBA, s * 4 * CH + nb * 256
            else:
                base, off = V_VBB, (s - 9) * 4 * CH + nb * 256
            seqs.append(k.lds(f"ds_read_b128 {r4(bfrag(s & 1, nb))}, v{base} offset:{off}"))
        return seqs

    nm_total = NKS * NBLK * 2
    m_start = NBLK * 2
    m_end = nm_total - NBLK * 2
    vi = 0
    mcount = 0
    rs = reads(0)
    for s in range(NKS):
        if first:
            if s % 2 == 0:
                t = s // 2
                for n in (2 * t, 2 * t + 1):
                    if n not in ast.rd_seq:
                        ast.read(k, n)
                        if n + NBUFA < 2 * 9:
                            k.wait_lg(ast.rd_seq[n])
                            ast.dma(k, n + NBUFA)
                k.wait_lg(ast.rd_seq[2 * t + 1])
        k.wait_lg(rs[-1])
        if first and s == NKS - 1:
            k.e(f"v_and_b32 v{V_T[0]}, 63, v{V_TID}")
            k.e(f"v_cmp_gt_u32 vcc, 48, v{V_T[0]}")
            k.e("s_nop 1")
            for mb in range(2):
                for j in range(1, 4):
                    a = afrag(mb, s) + j
                    k.e(f"v_cndmask_b32 v{a}, 0, v{a}, vcc")
            k.e("s_nop 1")
        if s < NKS - 1:
            rs = reads(s + 1)
        for nb in range(NBLK):
            for mb in range(2):
                cop = "0" if s == 0 else r4(acc(nb, mb))
                k.e(f"v_mfma_f32_16x16x32_bf16 {r4(acc(nb, mb))}, {r4(bfrag(s & 1, nb))}, {r4(afrag(mb, s))}, {cop}")
                mcount += 1
                if V and mcount > m_start:
                    frac = min(1.0, (mcount - m_start) / float(m_end - m_start))
                    target = int(len(V) * frac + 0.999)
                    while vi < target:
                        V[vi](k)
                        vi += 1
    while V and vi < len(V):
        V[vi](k)
        vi += 1
    k.e("s_nop 7")
    k.e("s_nop 1")
    for mb in range(2):
        so = "0" if mb == 0 else f"s{S_O1}"
        stg = V_STG[mb]
        P, Q = acc(0, mb), acc(1, mb)
        k.e(f"v_cvt_pk_bf16_f32 v{stg}, v{P}, v{P + 1}")
        k.e(f"v_cvt_pk_bf16_f32 v{stg + 1}, v{P + 2}, v{P + 3}")
        k.e(f"v_cvt_pk_bf16_f32 v{stg + 2}, v{Q}, v{Q + 1}")
        k.e(f"v_cvt_pk_bf16_f32 v{stg + 3}, v{Q + 2}, v{Q + 3}")
        k.vmem(f"buffer_store_dwordx4 {r4(stg)}, v{V_VO}, s[{S_OSRD}:{S_OSRD+3}], {so} offen offset:{2 * PW * p}")
        stg2 = V_T[mb * 2]
        R = acc(2, mb)
        k.e(f"v_cvt_pk_bf16_f32 v{stg2}, v{R}, v{R + 1}")
        k.e(f"v_cvt_pk_bf16_f32 v{stg2 + 1}, v{R + 2}, v{R + 3}")
        k.vmem(f"buffer_store_dwordx2 {r2(stg2)}, v{V_VO2}, s[{S_OSRD}:{S_OSRD+3}], {so} offen offset:{2 * PW * p}")


def srd(k, sd, plo, phi, nbytes):
    k.e(f"s_mov_b32 s{sd}, s{plo}")
    k.e(f"s_and_b32 s{sd + 1}, s{phi}, 0xffff")
    k.e(f"s_mov_b32 s{sd + 2}, {nbytes}")
    k.e(f"s_mov_b32 s{sd + 3}, 0x20000")


def gen():
    k = K()
    T = V_T
    k.e("s_cmp_ge_u32 s2, 256")
    k.e("s_cbranch_scc1 L_END")
    k.e("s_load_dwordx4 s[4:7], s[0:1], 0")
    k.e("s_load_dwordx4 s[8:11], s[0:1], 16")
    k.e("s_load_dwordx2 s[12:13], s[0:1], 40")
    if DEBUG:
        k.e("s_load_dwordx2 s[60:61], s[0:1], 48")
    k.stamp(0)
    lane, i16, g = T[0], T[1], T[2]
    k.e(f"v_and_b32 v{lane}, 63, v{V_TID}")
    k.e(f"v_lshrrev_b32 v{T[3]}, 6, v{V_TID}")
    k.e("s_nop 0")
    k.e(f"v_readfirstlane_b32 s{S_WAVE}, v{T[3]}")
    if MAPM:
        k.e("s_and_b32 s14, s2, 7")
        k.e("s_lshr_b32 s15, s2, 3")
    else:
        k.e("s_lshr_b32 s14, s2, 5")
        k.e("s_and_b32 s15, s2, 31")
    k.e(f"s_mul_i32 s{S_NC0}, s15, 144")
    k.e(f"s_lshl_b32 s{S_M0}, s14, 8")
    k.e(f"s_lshl_b32 s{S_T}, s{S_WAVE}, 5")
    k.e(f"s_add_u32 s{S_M0}, s{S_M0}, s{S_T}")
    k.e(f"s_mov_b32 s{S_O1}, {16 * N * 2}")
    for d in range(1, 8):
        k.e(f"s_mov_b32 s{S_QD + d - 1}, {d * N * 4}")
    k.e(f"s_mul_i32 s{S_STGB}, s{S_WAVE}, {STGW}")
    k.e(f"s_add_u32 s{S_STGB}, s{S_STGB}, {STG0}")
    k.e(f"v_and_b32 v{i16}, 15, v{lane}")
    k.e(f"v_lshrrev_b32 v{g}, 4, v{lane}")
    k.e(f"v_lshlrev_b32 v{T[4]}, 4, v{i16}")
    k.e(f"v_mul_u32_u24 v{V_VB}, {CH}, v{g}")
    k.e(f"v_add_u32 v{V_VB}, v{V_VB}, v{T[4]}")
    k.e(f"v_add_u32 v{T[3]}, s{S_M0}, v{i16}")
    k.e(f"v_mul_u32_u24 v{T[4]}, {N}, v{T[3]}")
    k.e(f"v_add_u32 v{T[4]}, s{S_NC0}, v{T[4]}")
    k.e(f"v_lshl_add_u32 v{T[5]}, v{g}, 3, v{T[4]}")
    k.e(f"v_lshlrev_b32 v{V_VO}, 1, v{T[5]}")
    k.e(f"v_lshl_add_u32 v{T[5]}, v{g}, 2, v{T[4]}")
    k.e(f"v_add_u32 v{T[5]}, 32, v{T[5]}")
    k.e(f"v_lshlrev_b32 v{V_VO2}, 1, v{T[5]}")
    k.e(f"v_lshrrev_b32 v{T[4]}, 1, v{i16}")
    k.e(f"v_xor_b32 v{T[4]}, v{T[4]}, v{g}")
    k.e(f"v_lshlrev_b32 v{T[4]}, 4, v{T[4]}")
    k.e(f"v_lshl_add_u32 v{T[4]}, v{i16}, 7, v{T[4]}")
    k.e(f"v_add_u32 v{V_AR}, s{S_STGB}, v{T[4]}")
    k.e(f"v_xor_b32 v{V_RGM}, 64, v{V_AR}")
    for h in range(2):
        k.e(f"v_lshrrev_b32 v{T[4]}, 3, v{lane}")
        k.e(f"v_lshrrev_b32 v{T[5]}, 4, v{lane}")
        if h:
            k.e(f"v_xor_b32 v{T[5]}, 4, v{T[5]}")
        k.e(f"v_and_b32 v{T[6]}, 7, v{lane}")
        k.e(f"v_xor_b32 v{T[5]}, v{T[5]}, v{T[6]}")
        k.e(f"v_add_u32 v{T[4]}, s{S_M0}, v{T[4]}")
        k.e(f"v_mul_u32_u24 v{T[4]}, {XROW}, v{T[4]}")
        k.e(f"v_lshl_add_u32 v{V_DMA[h]}, v{T[5]}, 4, v{T[4]}")
    rg, slot = T[3], T[4]
    k.e(f"v_mul_u32_u24 v{rg}, 1366, v{V_TID}")
    k.e(f"v_lshrrev_b32 v{rg}, 16, v{rg}")
    k.e(f"v_mul_u32_u24 v{T[5]}, 48, v{rg}")
    k.e(f"v_sub_u32 v{slot}, v{V_TID}, v{T[5]}")
    k.e(f"v_cmp_ne_u32 s[{S_VCC2}:{S_VCC2+1}], 7, v{rg}")
    k.e(f"v_and_b32 v{T[5]}, 15, v{slot}")
    k.e(f"v_lshrrev_b32 v{T[5]}, 2, v{T[5]}")
    k.e(f"v_lshlrev_b32 v{T[5]}, 3, v{T[5]}")
    k.e(f"v_lshrrev_b32 v{T[6]}, 4, v{slot}")
    k.e(f"v_lshl_add_u32 v{T[5]}, v{T[6]}, 2, v{T[5]}")
    k.e(f"v_and_b32 v{T[6]}, 3, v{slot}")
    k.e(f"v_add_u32 v{T[5]}, v{T[5]}, v{T[6]}")
    k.e(f"v_cmp_gt_u32 vcc, 32, v{slot}")
    k.e("s_nop 1")
    k.e(f"v_cndmask_b32 v{T[5]}, v{slot}, v{T[5]}, vcc")
    k.e(f"v_add_u32 v{T[5]}, s{S_NC0}, v{T[5]}")
    k.e(f"v_lshlrev_b32 v{V_VS}, 1, v{T[5]}")
    k.e(f"v_mul_u32_u24 v{T[6]}, {8 * N}, v{rg}")
    k.e(f"v_add_u32 v{T[6]}, v{T[6]}, v{T[5]}")
    k.e(f"v_lshlrev_b32 v{V_VQ}, 2, v{T[6]}")
    k.e(f"v_mul_u32_u24 v{T[6]}, {10 * CH}, v{rg}")
    k.e(f"v_lshl_add_u32 v{V_VW}, v{slot}, 4, v{T[6]}")
    k.e("s_waitcnt lgkmcnt(0)")
    srd(k, S_XSRD, 4, 5, M * XROW)
    srd(k, S_QSRD, 6, 7, 57 * N * 4)
    srd(k, S_SSRD, 8, 9, N * 2)
    srd(k, S_ZSRD, 10, 11, N * 2)
    srd(k, S_OSRD, 12, 13, M * N * 2)

    def body(k, dq):
        ast = AStage()
        if dq:
            sq0 = issue_dq_loads(k, 0, 0)
            sq1 = issue_dq_loads(k, 1, 1)
        for n in range(NBUFA):
            ast.dma(k, n)
        k.stamp(1)
        if dq:
            for op in dq_stream(0, sq0, 0):
                op(k)
        k.wait_lg_all()
        k.stamp(3)
        k.e("s_barrier")
        k.stamp(4)
        phase(k, 0, dq_stream(1, sq1, LDSBUF) if dq else None, first=True, ast=ast)
        k.wait_lg_all()
        k.stamp(5)
        k.e("s_barrier")
        V2 = None
        if dq:
            sq2 = issue_dq_loads(k, 0, 2)
            V2 = dq_stream(0, sq2, 0)
        phase(k, 1, V2)
        k.wait_lg_all()
        k.stamp(6)
        k.e("s_barrier")
        phase(k, 2, None)
        k.stamp(7)

    k.e(f"s_cmp_ge_u32 s{S_WAVE}, 6")
    k.e("s_cbranch_scc1 L_NODQ")
    ka = k.fork()
    body(ka, True)
    ka.e("s_branch L_DONE")
    kb = k.fork()
    body(kb, False)
    k.out += ka.out
    k.label("L_NODQ")
    k.out += kb.out
    k.label("L_DONE")
    if DEBUG:
        k.e("s_waitcnt vmcnt(0)")
        k.stamp(8)
        k.e("s_mov_b32 s62, 256")
        k.e("s_mov_b32 s63, 0x20000")
        k.e("s_and_b32 s61, s61, 0xffff")
        k.e(f"s_cmp_eq_u32 s2, {DBG_WG}")
        k.e("s_cbranch_scc0 L_END")
        k.e(f"s_cmp_eq_u32 s{S_WAVE}, {DBG_WAVE}")
        k.e("s_cbranch_scc0 L_END")
        k.e("s_mov_b64 exec, 1")
        for i in range(1, 9):
            k.e(f"s_sub_u32 s{64 + 2 * i}, s{64 + 2 * i}, s64")
        for i in range(1, 9):
            k.e(f"v_mov_b32 v16, s{64 + 2 * i}")
            k.e(f"v_mov_b32 v17, {4 * i}")
            k.e("buffer_store_dword v16, v17, s[60:63], 0 offen")
            k.e("s_waitcnt vmcnt(0)")
    k.label("L_END")
    k.e("s_endpgm")
    return k


HEADER = open("standalone__weight_only_int_gptq__prompt.s.ref").read()


def main():
    for t in range(512):
        assert (t * 1366) >> 16 == t // 48
    k = gen()
    lines = HEADER.split("\n")
    out = []
    for ln in lines:
        if ln.startswith("; @launch"):
            out.append(f"; @launch grid=(256,1,1) block=(512,1,1) lds={LDS_TOTAL}")
            continue
        out.append(ln)
        if ln.startswith("standalone__weight_only_int_gptq__prompt_kernel:"):
            out += k.out
            break
    idx = lines.index("s_endpgm")
    out += lines[idx + 1:]
    open(OUTFILE, "w").write("\n".join(out))


if __name__ == "__main__":
    main()
```

```python
import sys, os
DEBUG = len(sys.argv) > 1 and sys.argv[1] == "debug"
OUTFILE = "dbg.s" if DEBUG else "standalone__weight_only_int_gptq__prompt.s"
DBG_WG = int(sys.argv[2]) if len(sys.argv) > 2 else 0
DBG_WAVE = int(sys.argv[3]) if len(sys.argv) > 3 else 0

M, KD, N = 2048, 570, 4608
XROW = KD * 2
NCH = 9
NB = 9
ABYTES = 128 * 128
BCH = 288 * 16
BBYTES = 8 * BCH
BUF = ABYTES + BBYTES
LDS_TOTAL = 2 * BUF

V_TID = 0
V_AR = [1, 2]
V_AR1 = [3, 4]
V_VB = 5
V_VW = 6
V_VQ = 7
V_STG = [8, 12]
V_T = [16, 17, 18, 19, 20, 21, 22, 23]
V_VO = 24
V_VO2 = 25
V_DMA = [26, 27]
V_S, V_ZS = 28, 29
V_VW1, V_VB1 = 30, 31
V_Q = [32, 40]
V_AF = 48
V_BF = 64
V_ACC = 136


def acc(nb, mb):
    return V_ACC + (nb * 2 + mb) * 4


def bfrag(t, nb):
    return V_BF + t * 36 + nb * 4


def afrag(t, mb):
    return V_AF + (t * 2 + mb) * 4


def r4(b):
    return f"v[{b}:{b + 3}]"


def r2(b):
    return f"v[{b}:{b + 1}]"


S_XSRD, S_QSRD, S_SSRD, S_ZSRD, S_OSRD = 16, 20, 24, 28, 32
S_O1 = 37
S_WAVE, S_M0, S_NC0, S_T, S_T2 = 46, 47, 48, 49, 50
S_DOFF = 54
S_EX = 52


class K:
    def __init__(self):
        self.out = []
        self.vm = 0
        self.lg = 0
        self.vm_done = -1
        self.lg_done = -1

    def e(self, s):
        self.out.append("    " + s)

    def label(self, s):
        self.out.append(s + ":")

    def vmem(self, s):
        self.e(s)
        self.vm += 1
        return self.vm - 1

    def lds(self, s):
        self.e(s)
        self.lg += 1
        return self.lg - 1

    def wait_vm(self, seq):
        if seq is None or seq <= self.vm_done:
            return
        n = min(self.vm - 1 - seq, 63)
        self.e(f"s_waitcnt vmcnt({n})")
        self.vm_done = max(self.vm_done, self.vm - 1 - n)

    def wait_lg(self, seq):
        if seq <= self.lg_done:
            return
        n = min(self.lg - 1 - seq, 15)
        self.e(f"s_waitcnt lgkmcnt({n})")
        self.lg_done = max(self.lg_done, self.lg - 1 - n)

    def wait_lg_all(self):
        self.e("s_waitcnt lgkmcnt(0)")
        self.lg_done = self.lg - 1

    def stamp(self, i):
        if not DEBUG:
            return
        self.e(f"s_memtime s[{64 + 2 * i}:{65 + 2 * i}]")
        self.e("s_waitcnt lgkmcnt(0)")
        self.lg_done = self.lg - 1

    def fork(self):
        k = K()
        k.vm, k.lg, k.vm_done, k.lg_done = self.vm, self.lg, self.vm_done, self.lg_done
        return k


def chunk_dwords(c):
    k0, k1 = 64 * c, min(64 * c + 63, KD - 1)
    return list(range(k0 // 10, k1 // 10 + 1))


def q_loads(k, c):
    qs = V_Q[c & 1]
    seq = None
    for i, p in enumerate(chunk_dwords(c)):
        k.e(f"s_mov_b32 s{S_T2}, {p * N * 4}")
        seq = k.vmem(f"buffer_load_dword v{qs + i}, v{V_VQ}, s[{S_QSRD}:{S_QSRD+3}], s{S_T2} offen")
    return seq


def dq_stream(c, last_seq):
    qs = V_Q[c & 1]
    bbase = ABYTES
    vw = V_VW1 if (c & 1) else V_VW
    dws = chunk_dwords(c)
    V = [lambda k: k.wait_vm(last_seq)]
    for t0 in range(0, 64, 4):
        tm = [V_T[(t0 // 4 % 2) * 4 + i] for i in range(4)]
        valid = [64 * c + t0 + i < KD for i in range(4)]
        for i in range(4):
            kk = 64 * c + t0 + i
            if valid[i]:
                d, f = kk // 10 - dws[0], kk % 10
                V.append(lambda k, i=i, d=d, f=f, tm=tm: k.e(f"v_bfe_u32 v{tm[i]}, v{qs + d}, {3 * f}, 3"))
        for i in range(4):
            if valid[i]:
                V.append(lambda k, i=i, tm=tm: k.e(f"v_cvt_f32_u32 v{tm[i]}, v{tm[i]}"))
        for i in range(4):
            if valid[i]:
                V.append(lambda k, i=i, tm=tm: k.e(f"v_fma_f32 v{tm[i]}, v{tm[i]}, v{V_S}, -v{V_ZS}"))
            else:
                V.append(lambda k, i=i, tm=tm: k.e(f"v_mov_b32 v{tm[i]}, 0"))
        j, pos = divmod(t0, 8)
        stg = V_STG[j % 2]
        for h in range(2):
            V.append(lambda k, h=h, tm=tm, stg=stg, pos=pos:
                     k.e(f"v_cvt_pk_bf16_f32 v{stg + pos // 2 + h}, v{tm[2 * h]}, v{tm[2 * h + 1]}"))
        if pos == 4:
            V.append(lambda k, stg=stg, j=j: k.lds(f"ds_write_b128 v{vw}, {r4(stg)} offset:{bbase + j * BCH}"))
    return V


def a_dma(k, c):
    seq = None
    for h in range(2):
        k.e(f"s_mov_b32 s{S_T}, s{S_WAVE}")
        k.e(f"s_lshl_b32 s{S_T}, s{S_T}, 11")
        k.e(f"s_add_u32 s{S_T}, s{S_T}, {(c & 1) * BUF + h * 1024}")
        k.e(f"s_mov_b32 m0, s{S_T}")
        k.e(f"s_mov_b32 s{S_DOFF}, {128 * c}")
        seq = k.vmem(f"buffer_load_dwordx4 v{V_DMA[h]}, s[{S_XSRD}:{S_XSRD+3}], s{S_DOFF} offen lds")
    return seq


def compute(k, c, V):
    base = (c & 1) * BUF
    nm = 2 * NB * 2
    vi = 0
    mc = 0

    def reads(kk):
        seqs = []
        for mb in range(2):
            seqs.append(k.lds(f"ds_read_b128 {r4(afrag(kk, mb))}, v{(V_AR if kk == 0 else V_AR1)[mb]} offset:{base}"))
        for nb in range(NB):
            seqs.append(k.lds(f"ds_read_b128 {r4(bfrag(kk, nb))}, v{V_VB1 if base else V_VB} offset:{ABYTES + kk * 4 * BCH + nb * 256}"))
        return seqs
    rs = [reads(0), reads(1)]
    for kk in range(2):
        k.wait_lg(rs[kk][-1])
        if c == NCH - 1 and kk == 1:
            k.e(f"v_and_b32 v{V_T[0]}, 63, v{V_TID}")
            k.e(f"v_cmp_gt_u32 vcc, 48, v{V_T[0]}")
            k.e("s_nop 1")
            for mb in range(2):
                for j in range(1, 4):
                    a = afrag(kk, mb) + j
                    k.e(f"v_cndmask_b32 v{a}, 0, v{a}, vcc")
            k.e("s_nop 1")
        for nb in range(NB):
            for mb in range(2):
                cop = "0" if (c == 0 and kk == 0) else r4(acc(nb, mb))
                k.e(f"v_mfma_f32_16x16x32_bf16 {r4(acc(nb, mb))}, {r4(bfrag(kk, nb))}, {r4(afrag(kk, mb))}, {cop}")
                mc += 1
                if V:
                    target = int(len(V) * min(1.0, mc / float(nm - 2)) + 0.999)
                    while vi < target:
                        V[vi](k)
                        vi += 1
    while V and vi < len(V):
        V[vi](k)
        vi += 1


def srd(k, sd, plo, phi, nbytes):
    k.e(f"s_mov_b32 s{sd}, s{plo}")
    k.e(f"s_and_b32 s{sd + 1}, s{phi}, 0xffff")
    k.e(f"s_mov_b32 s{sd + 2}, {nbytes}")
    k.e(f"s_mov_b32 s{sd + 3}, 0x20000")


def gen():
    k = K()
    T = V_T
    k.e("s_cmp_ge_u32 s2, 256")
    k.e("s_cbranch_scc1 L_END")
    k.e("s_load_dwordx4 s[4:7], s[0:1], 0")
    k.e("s_load_dwordx4 s[8:11], s[0:1], 16")
    k.e("s_load_dwordx2 s[12:13], s[0:1], 40")
    if DEBUG:
        k.e("s_load_dwordx2 s[60:61], s[0:1], 48")
    k.stamp(0)
    lane, i16, g = T[0], T[1], T[2]
    k.e(f"v_and_b32 v{lane}, 63, v{V_TID}")
    k.e(f"v_lshrrev_b32 v{T[3]}, 6, v{V_TID}")
    k.e("s_nop 0")
    k.e(f"v_readfirstlane_b32 s{S_WAVE}, v{T[3]}")
    k.e("s_lshr_b32 s14, s2, 4")
    k.e("s_and_b32 s15, s2, 15")
    k.e(f"s_mul_i32 s{S_NC0}, s15, 288")
    k.e(f"s_lshl_b32 s{S_M0}, s14, 7")
    k.e(f"s_mov_b32 s{S_O1}, {16 * N * 2}")
    k.e(f"s_and_b32 s14, s{S_WAVE}, 3")
    k.e(f"s_lshr_b32 s15, s{S_WAVE}, 2")
    k.e(f"v_and_b32 v{i16}, 15, v{lane}")
    k.e(f"v_lshrrev_b32 v{g}, 4, v{lane}")
    k.e("s_mul_i32 s3, s15, 144")
    k.e(f"v_add_u32 v{T[4]}, s3, v{i16}")
    k.e(f"v_lshlrev_b32 v{T[4]}, 4, v{T[4]}")
    k.e(f"v_mul_u32_u24 v{V_VB}, {BCH}, v{g}")
    k.e(f"v_add_u32 v{V_VB}, v{V_VB}, v{T[4]}")
    for mb in range(2):
        k.e(f"s_lshl_b32 s3, s14, 5")
        k.e(f"s_add_u32 s3, s3, {16 * mb}")
        k.e(f"v_add_u32 v{T[4]}, s3, v{i16}")
        k.e(f"v_lshrrev_b32 v{T[5]}, 1, v{T[4]}")
        k.e(f"v_and_b32 v{T[5]}, 7, v{T[5]}")
        k.e(f"v_xor_b32 v{T[5]}, v{T[5]}, v{g}")
        k.e(f"v_lshlrev_b32 v{T[5]}, 4, v{T[5]}")
        k.e(f"v_lshl_add_u32 v{V_AR[mb]}, v{T[4]}, 7, v{T[5]}")
        k.e(f"v_xor_b32 v{V_AR1[mb]}, 64, v{V_AR[mb]}")
    k.e(f"s_lshl_b32 s3, s14, 5")
    k.e(f"s_add_u32 s3, s3, s{S_M0}")
    k.e(f"v_add_u32 v{T[3]}, s3, v{i16}")
    k.e(f"v_mul_u32_u24 v{T[4]}, {N}, v{T[3]}")
    k.e("s_mul_i32 s3, s15, 144")
    k.e(f"s_add_u32 s3, s3, s{S_NC0}")
    k.e(f"v_add_u32 v{T[4]}, s3, v{T[4]}")
    k.e(f"v_lshl_add_u32 v{T[5]}, v{g}, 3, v{T[4]}")
    k.e(f"v_lshlrev_b32 v{V_VO}, 1, v{T[5]}")
    k.e(f"v_lshl_add_u32 v{T[5]}, v{g}, 2, v{T[4]}")
    k.e(f"v_add_u32 v{T[5]}, 128, v{T[5]}")
    k.e(f"v_lshlrev_b32 v{V_VO2}, 1, v{T[5]}")
    for h in range(2):
        k.e(f"s_lshl_b32 s3, s{S_WAVE}, 4")
        k.e(f"s_add_u32 s3, s3, {8 * h}")
        k.e(f"v_lshrrev_b32 v{T[4]}, 3, v{lane}")
        k.e(f"v_add_u32 v{T[4]}, s3, v{T[4]}")
        k.e(f"v_lshrrev_b32 v{T[5]}, 1, v{T[4]}")
        k.e(f"v_and_b32 v{T[5]}, 7, v{T[5]}")
        k.e(f"v_and_b32 v{T[6]}, 7, v{lane}")
        k.e(f"v_xor_b32 v{T[5]}, v{T[5]}, v{T[6]}")
        k.e(f"v_add_u32 v{T[4]}, s{S_M0}, v{T[4]}")
        k.e(f"v_mul_u32_u24 v{T[4]}, {XROW}, v{T[4]}")
        k.e(f"v_lshl_add_u32 v{V_DMA[h]}, v{T[5]}, 4, v{T[4]}")
    slot, r = V_TID, T[3]
    k.e(f"v_subrev_u32 v{r}, 144, v{slot}")
    k.e(f"v_cmp_gt_u32 vcc, 144, v{slot}")
    k.e("s_nop 1")
    k.e(f"v_cndmask_b32 v{r}, v{r}, v{slot}, vcc")
    k.e(f"v_sub_u32 v{T[7]}, v{slot}, v{r}")
    k.e(f"v_and_b32 v{T[4]}, 15, v{r}")
    k.e(f"v_lshrrev_b32 v{T[4]}, 2, v{T[4]}")
    k.e(f"v_lshlrev_b32 v{T[4]}, 3, v{T[4]}")
    k.e(f"v_lshrrev_b32 v{T[5]}, 4, v{r}")
    k.e(f"v_and_b32 v{T[5]}, 1, v{T[5]}")
    k.e(f"v_lshl_add_u32 v{T[4]}, v{T[5]}, 2, v{T[4]}")
    k.e(f"v_and_b32 v{T[5]}, 3, v{r}")
    k.e(f"v_add_u32 v{T[4]}, v{T[4]}, v{T[5]}")
    k.e(f"v_and_b32 v{T[5]}, 0xe0, v{r}")
    k.e(f"v_add_u32 v{T[4]}, v{T[4]}, v{T[5]}")
    k.e(f"v_cmp_gt_u32 vcc, 128, v{r}")
    k.e("s_nop 1")
    k.e(f"v_cndmask_b32 v{T[4]}, v{r}, v{T[4]}, vcc")
    k.e(f"v_add_u32 v{T[4]}, v{T[4]}, v{T[7]}")
    k.e(f"v_add_u32 v{T[4]}, s{S_NC0}, v{T[4]}")
    k.e(f"v_lshlrev_b32 v{V_VQ}, 2, v{T[4]}")
    k.e(f"v_lshlrev_b32 v{T[4]}, 1, v{T[4]}")
    k.e(f"v_lshlrev_b32 v{V_VW}, 4, v{slot}")
    k.e(f"v_add_u32 v{V_VW1}, {BUF}, v{V_VW}")
    k.e(f"v_add_u32 v{V_VB1}, {BUF}, v{V_VB}")
    k.e("s_waitcnt lgkmcnt(0)")
    srd(k, S_XSRD, 4, 5, M * XROW)
    srd(k, S_QSRD, 6, 7, 57 * N * 4)
    srd(k, S_SSRD, 8, 9, N * 2)
    srd(k, S_ZSRD, 10, 11, N * 2)
    srd(k, S_OSRD, 12, 13, M * N * 2)

    def body(k, dq):
        if dq:
            k.e(f"v_cmp_gt_u32 vcc, 288, v{V_TID}")
            k.e(f"s_and_saveexec_b64 s[{S_EX}:{S_EX+1}], vcc")
            k.vmem(f"buffer_load_ushort v{V_S}, v{T[4]}, s[{S_SSRD}:{S_SSRD+3}], 0 offen")
            sz = k.vmem(f"buffer_load_ushort v{V_ZS}, v{T[4]}, s[{S_ZSRD}:{S_ZSRD+3}], 0 offen")
            sq = {0: q_loads(k, 0), 1: q_loads(k, 1)}
            k.e(f"s_mov_b64 exec, s[{S_EX}:{S_EX+1}]")
        sa = {0: a_dma(k, 0)}
        k.stamp(1)
        if dq:
            k.e(f"s_and_saveexec_b64 s[{S_EX}:{S_EX+1}], vcc")
            k.wait_vm(sz)
            k.e(f"v_lshlrev_b32 v{V_S}, 16, v{V_S}")
            k.e(f"v_lshlrev_b32 v{V_ZS}, 16, v{V_ZS}")
            k.e(f"v_mul_f32 v{V_ZS}, v{V_ZS}, v{V_S}")
            for op in dq_stream(0, sq[0]):
                op(k)
            k.e(f"s_mov_b64 exec, s[{S_EX}:{S_EX+1}]")
        k.stamp(3)
        for c in range(NCH):
            k.wait_vm(sa[c])
            k.wait_lg_all()
            k.e("s_barrier")
            if c == 0:
                k.stamp(4)
            V = None
            if c + 1 < NCH:
                sa[c + 1] = a_dma(k, c + 1)
                if dq:
                    V = [lambda kk: kk.e(f"s_and_saveexec_b64 s[{S_EX}:{S_EX+1}], vcc")]
                    if c + 2 < NCH:
                        def ql(kk, c=c):
                            sq[c + 2] = q_loads(kk, c + 2)
                        V.append(ql)
                    dqs = dq_stream(c + 1, sq[c + 1])
                    V += dqs
                    V.append(lambda kk: kk.e(f"s_mov_b64 exec, s[{S_EX}:{S_EX+1}]"))
            if V:
                for op in V:
                    op(k)
            compute(k, c, None)
        k.stamp(5)
        k.e("s_nop 7")
        k.e("s_nop 1")
        si = 0
        for mb in range(2):
            so = "0" if mb == 0 else f"s{S_O1}"
            for pp in range(4):
                stg = [V_STG[0], V_STG[1], V_T[0], V_T[4]][si % 4]
                si += 1
                P, Q = acc(2 * pp, mb), acc(2 * pp + 1, mb)
                k.e(f"v_cvt_pk_bf16_f32 v{stg}, v{P}, v{P + 1}")
                k.e(f"v_cvt_pk_bf16_f32 v{stg + 1}, v{P + 2}, v{P + 3}")
                k.e(f"v_cvt_pk_bf16_f32 v{stg + 2}, v{Q}, v{Q + 1}")
                k.e(f"v_cvt_pk_bf16_f32 v{stg + 3}, v{Q + 2}, v{Q + 3}")
                k.vmem(f"buffer_store_dwordx4 {r4(stg)}, v{V_VO}, s[{S_OSRD}:{S_OSRD+3}], {so} offen offset:{64 * pp}")
            stg = [V_STG[0], V_STG[1], V_T[0], V_T[4]][si % 4]
            si += 1
            R = acc(8, mb)
            k.e(f"v_cvt_pk_bf16_f32 v{stg}, v{R}, v{R + 1}")
            k.e(f"v_cvt_pk_bf16_f32 v{stg + 1}, v{R + 2}, v{R + 3}")
            k.vmem(f"buffer_store_dwordx2 {r2(stg)}, v{V_VO2}, s[{S_OSRD}:{S_OSRD+3}], {so} offen")
        k.stamp(6)

    k.e(f"s_cmp_ge_u32 s{S_WAVE}, 5")
    k.e("s_cbranch_scc1 L_NODQ")
    ka = k.fork()
    body(ka, True)
    ka.e("s_branch L_DONE")
    kb = k.fork()
    body(kb, False)
    k.out += ka.out
    k.label("L_NODQ")
    k.out += kb.out
    k.label("L_DONE")
    if DEBUG:
        k.e("s_waitcnt vmcnt(0)")
        k.stamp(7)
        k.e("s_mov_b32 s62, 256")
        k.e("s_mov_b32 s63, 0x20000")
        k.e("s_and_b32 s61, s61, 0xffff")
        k.e(f"s_cmp_eq_u32 s2, {DBG_WG}")
        k.e("s_cbranch_scc0 L_END")
        k.e(f"s_cmp_eq_u32 s{S_WAVE}, {DBG_WAVE}")
        k.e("s_cbranch_scc0 L_END")
        k.e("s_mov_b64 exec, 1")
        for i in (1, 3, 4, 5, 6, 7):
            k.e(f"s_sub_u32 s{64 + 2 * i}, s{64 + 2 * i}, s64")
        for i in (1, 3, 4, 5, 6, 7):
            k.e(f"v_mov_b32 v16, s{64 + 2 * i}")
            k.e(f"v_mov_b32 v17, {4 * i}")
            k.e("buffer_store_dword v16, v17, s[60:63], 0 offen")
            k.e("s_waitcnt vmcnt(0)")
    k.label("L_END")
    k.e("s_endpgm")
    return k


HEADER = open("standalone__weight_only_int_gptq__prompt.s.ref").read()


def main():
    k = gen()
    lines = HEADER.split("\n")
    out = []
    for ln in lines:
        if ln.startswith("; @launch"):
            out.append(f"; @launch grid=(256,1,1) block=(512,1,1) lds={LDS_TOTAL}")
            continue
        out.append(ln)
        if ln.startswith("standalone__weight_only_int_gptq__prompt_kernel:"):
            out += k.out
            break
    idx = lines.index("s_endpgm")
    out += lines[idx + 1:]
    open(OUTFILE, "w").write("\n".join(out))


if __name__ == "__main__":
    main()
```

```python
import sys, os
DEBUG = len(sys.argv) > 1 and sys.argv[1] == "debug"
OUTFILE = "dbg.s" if DEBUG else "standalone__weight_only_int_gptq__prompt.s"
DBG_WG = int(sys.argv[2]) if len(sys.argv) > 2 else 0
DBG_WAVE = int(sys.argv[3]) if len(sys.argv) > 3 else 0

M, KD, N = 2048, 570, 4608
XROW = KD * 2
NCH = 9
NB = 9
ABYTES = 128 * 128
BCH = 288 * 16
BBYTES = 8 * BCH
BUF = ABYTES + BBYTES
LDS_TOTAL = 2 * BUF

V_TID = 0
V_AR = [1, 2]
V_AR1 = [3, 4]
V_VB = 5
V_VW = 6
V_VQ = 7
V_STG = [8, 12]
V_T = [16, 17, 18, 19, 20, 21, 22, 23]
V_VO = 24
V_VO2 = 25
V_DMA = [26, 27]
V_S, V_ZS = 28, 29
V_VW1, V_VB1 = 30, 31
V_Q = [32, 40]
V_AF = 48
V_BF = 64
V_ACC = 136


def acc(nb, mb):
    return V_ACC + (nb * 2 + mb) * 4


def bfrag(t, nb):
    return V_BF + t * 36 + nb * 4


def afrag(t, mb):
    return V_AF + (t * 2 + mb) * 4


def r4(b):
    return f"v[{b}:{b + 3}]"


def r2(b):
    return f"v[{b}:{b + 1}]"


S_XSRD, S_QSRD, S_SSRD, S_ZSRD, S_OSRD = 16, 20, 24, 28, 32
S_O1 = 37
S_WAVE, S_M0, S_NC0, S_T, S_T2 = 46, 47, 48, 49, 50
S_DOFF = 54
S_EX = 52


class K:
    def __init__(self):
        self.out = []
        self.vm = 0
        self.lg = 0
        self.vm_done = -1
        self.lg_done = -1

    def e(self, s):
        self.out.append("    " + s)

    def label(self, s):
        self.out.append(s + ":")

    def vmem(self, s):
        self.e(s)
        self.vm += 1
        return self.vm - 1

    def lds(self, s):
        self.e(s)
        self.lg += 1
        return self.lg - 1

    def wait_vm(self, seq):
        if seq is None or seq <= self.vm_done:
            return
        n = min(self.vm - 1 - seq, 63)
        self.e(f"s_waitcnt vmcnt({n})")
        self.vm_done = max(self.vm_done, self.vm - 1 - n)

    def wait_lg(self, seq):
        if seq <= self.lg_done:
            return
        n = min(self.lg - 1 - seq, 15)
        self.e(f"s_waitcnt lgkmcnt({n})")
        self.lg_done = max(self.lg_done, self.lg - 1 - n)

    def wait_lg_all(self):
        self.e("s_waitcnt lgkmcnt(0)")
        self.lg_done = self.lg - 1

    def stamp(self, i):
        if not DEBUG:
            return
        self.e(f"s_memtime s[{64 + 2 * i}:{65 + 2 * i}]")
        self.e("s_waitcnt lgkmcnt(0)")
        self.lg_done = self.lg - 1

    def fork(self):
        k = K()
        k.vm, k.lg, k.vm_done, k.lg_done = self.vm, self.lg, self.vm_done, self.lg_done
        return k


def chunk_dwords(c):
    k0, k1 = 64 * c, min(64 * c + 63, KD - 1)
    return list(range(k0 // 10, k1 // 10 + 1))


def q_loads(k, c):
    qs = V_Q[c & 1]
    seq = None
    for i, p in enumerate(chunk_dwords(c)):
        k.e(f"s_mov_b32 s{S_T2}, {p * N * 4}")
        seq = k.vmem(f"buffer_load_dword v{qs + i}, v{V_VQ}, s[{S_QSRD}:{S_QSRD+3}], s{S_T2} offen")
    return seq


def dq_stream(c, last_seq):
    qs = V_Q[c & 1]
    bbase = ABYTES
    vw = V_VW1 if (c & 1) else V_VW
    dws = chunk_dwords(c)
    V = [lambda k: k.wait_vm(last_seq)]
    for t0 in range(0, 64, 4):
        tm = [V_T[(t0 // 4 % 2) * 4 + i] for i in range(4)]
        valid = [64 * c + t0 + i < KD for i in range(4)]
        for i in range(4):
            kk = 64 * c + t0 + i
            if valid[i]:
                d, f = kk // 10 - dws[0], kk % 10
                V.append(lambda k, i=i, d=d, f=f, tm=tm: k.e(f"v_bfe_u32 v{tm[i]}, v{qs + d}, {3 * f}, 3"))
        for i in range(4):
            if valid[i]:
                V.append(lambda k, i=i, tm=tm: k.e(f"v_cvt_f32_u32 v{tm[i]}, v{tm[i]}"))
        for i in range(4):
            if valid[i]:
                V.append(lambda k, i=i, tm=tm: k.e(f"v_fma_f32 v{tm[i]}, v{tm[i]}, v{V_S}, -v{V_ZS}"))
            else:
                V.append(lambda k, i=i, tm=tm: k.e(f"v_mov_b32 v{tm[i]}, 0"))
        j, pos = divmod(t0, 8)
        stg = V_STG[j % 2]
        for h in range(2):
            V.append(lambda k, h=h, tm=tm, stg=stg, pos=pos:
                     k.e(f"v_cvt_pk_bf16_f32 v{stg + pos // 2 + h}, v{tm[2 * h]}, v{tm[2 * h + 1]}"))
        if pos == 4:
            def wr(k, stg=stg, j=j):
                k.e(f"s_and_saveexec_b64 s[58:59], s[56:57]")
                k.lds(f"ds_write_b128 v{vw}, {r4(stg)} offset:{bbase + j * BCH}")
                k.e(f"s_mov_b64 exec, s[58:59]")
            V.append(wr)
    return V


def a_dma(k, c):
    seq = None
    for h in range(2):
        k.e(f"s_mov_b32 s{S_T}, s{S_WAVE}")
        k.e(f"s_lshl_b32 s{S_T}, s{S_T}, 11")
        k.e(f"s_add_u32 s{S_T}, s{S_T}, {(c & 1) * BUF + h * 1024}")
        k.e(f"s_mov_b32 m0, s{S_T}")
        k.e(f"s_mov_b32 s{S_DOFF}, {128 * c}")
        seq = k.vmem(f"buffer_load_dwordx4 v{V_DMA[h]}, s[{S_XSRD}:{S_XSRD+3}], s{S_DOFF} offen lds")
    return seq


def compute(k, c, V):
    base = (c & 1) * BUF
    nm = 2 * NB * 2
    vi = 0
    mc = 0

    def reads(kk):
        seqs = []
        for mb in range(2):
            seqs.append(k.lds(f"ds_read_b128 {r4(afrag(kk, mb))}, v{(V_AR if kk == 0 else V_AR1)[mb]} offset:{base}"))
        for nb in range(NB):
            seqs.append(k.lds(f"ds_read_b128 {r4(bfrag(kk, nb))}, v{V_VB1 if base else V_VB} offset:{ABYTES + kk * 4 * BCH + nb * 256}"))
        return seqs
    rs = [reads(0), reads(1)]
    for kk in range(2):
        k.wait_lg(rs[kk][1])
        if c == NCH - 1 and kk == 1:
            k.e(f"v_and_b32 v{V_T[0]}, 63, v{V_TID}")
            k.e(f"v_cmp_gt_u32 vcc, 48, v{V_T[0]}")
            k.e("s_nop 1")
            for mb in range(2):
                for j in range(1, 4):
                    a = afrag(kk, mb) + j
                    k.e(f"v_cndmask_b32 v{a}, 0, v{a}, vcc")
            k.e("s_nop 1")
        for nb in range(NB):
            k.wait_lg(rs[kk][2 + nb])
            for mb in range(2):
                cop = "0" if (c == 0 and kk == 0) else r4(acc(nb, mb))
                k.e(f"v_mfma_f32_16x16x32_bf16 {r4(acc(nb, mb))}, {r4(bfrag(kk, nb))}, {r4(afrag(kk, mb))}, {cop}")
                mc += 1
                if V:
                    target = int(len(V) * min(1.0, mc / float(nm - 2)) + 0.999)
                    while vi < target:
                        V[vi](k)
                        vi += 1
    while V and vi < len(V):
        V[vi](k)
        vi += 1


def srd(k, sd, plo, phi, nbytes):
    k.e(f"s_mov_b32 s{sd}, s{plo}")
    k.e(f"s_and_b32 s{sd + 1}, s{phi}, 0xffff")
    k.e(f"s_mov_b32 s{sd + 2}, {nbytes}")
    k.e(f"s_mov_b32 s{sd + 3}, 0x20000")


def gen():
    k = K()
    T = V_T
    k.e("s_cmp_ge_u32 s2, 256")
    k.e("s_cbranch_scc1 L_END")
    k.e("s_load_dwordx4 s[4:7], s[0:1], 0")
    k.e("s_load_dwordx4 s[8:11], s[0:1], 16")
    k.e("s_load_dwordx2 s[12:13], s[0:1], 40")
    if DEBUG:
        k.e("s_load_dwordx2 s[60:61], s[0:1], 48")
    k.stamp(0)
    lane, i16, g = T[0], T[1], T[2]
    k.e(f"v_and_b32 v{lane}, 63, v{V_TID}")
    k.e(f"v_lshrrev_b32 v{T[3]}, 6, v{V_TID}")
    k.e("s_nop 0")
    k.e(f"v_readfirstlane_b32 s{S_WAVE}, v{T[3]}")
    k.e("s_lshr_b32 s14, s2, 4")
    k.e("s_and_b32 s15, s2, 15")
    k.e(f"s_mul_i32 s{S_NC0}, s15, 288")
    k.e(f"s_lshl_b32 s{S_M0}, s14, 7")
    k.e(f"s_mov_b32 s{S_O1}, {16 * N * 2}")
    k.e(f"s_and_b32 s14, s{S_WAVE}, 3")
    k.e(f"s_lshr_b32 s15, s{S_WAVE}, 2")
    k.e(f"v_and_b32 v{i16}, 15, v{lane}")
    k.e(f"v_lshrrev_b32 v{g}, 4, v{lane}")
    k.e("s_mul_i32 s3, s15, 144")
    k.e(f"v_add_u32 v{T[4]}, s3, v{i16}")
    k.e(f"v_lshlrev_b32 v{T[4]}, 4, v{T[4]}")
    k.e(f"v_mul_u32_u24 v{V_VB}, {BCH}, v{g}")
    k.e(f"v_add_u32 v{V_VB}, v{V_VB}, v{T[4]}")
    for mb in range(2):
        k.e(f"s_lshl_b32 s3, s14, 5")
        k.e(f"s_add_u32 s3, s3, {16 * mb}")
        k.e(f"v_add_u32 v{T[4]}, s3, v{i16}")
        k.e(f"v_lshrrev_b32 v{T[5]}, 1, v{T[4]}")
        k.e(f"v_and_b32 v{T[5]}, 7, v{T[5]}")
        k.e(f"v_xor_b32 v{T[5]}, v{T[5]}, v{g}")
        k.e(f"v_lshlrev_b32 v{T[5]}, 4, v{T[5]}")
        k.e(f"v_lshl_add_u32 v{V_AR[mb]}, v{T[4]}, 7, v{T[5]}")
        k.e(f"v_xor_b32 v{V_AR1[mb]}, 64, v{V_AR[mb]}")
    k.e(f"s_lshl_b32 s3, s14, 5")
    k.e(f"s_add_u32 s3, s3, s{S_M0}")
    k.e(f"v_add_u32 v{T[3]}, s3, v{i16}")
    k.e(f"v_mul_u32_u24 v{T[4]}, {N}, v{T[3]}")
    k.e("s_mul_i32 s3, s15, 144")
    k.e(f"s_add_u32 s3, s3, s{S_NC0}")
    k.e(f"v_add_u32 v{T[4]}, s3, v{T[4]}")
    k.e(f"v_lshl_add_u32 v{T[5]}, v{g}, 3, v{T[4]}")
    k.e(f"v_lshlrev_b32 v{V_VO}, 1, v{T[5]}")
    k.e(f"v_lshl_add_u32 v{T[5]}, v{g}, 2, v{T[4]}")
    k.e(f"v_add_u32 v{T[5]}, 128, v{T[5]}")
    k.e(f"v_lshlrev_b32 v{V_VO2}, 1, v{T[5]}")
    for h in range(2):
        k.e(f"s_lshl_b32 s3, s{S_WAVE}, 4")
        k.e(f"s_add_u32 s3, s3, {8 * h}")
        k.e(f"v_lshrrev_b32 v{T[4]}, 3, v{lane}")
        k.e(f"v_add_u32 v{T[4]}, s3, v{T[4]}")
        k.e(f"v_lshrrev_b32 v{T[5]}, 1, v{T[4]}")
        k.e(f"v_and_b32 v{T[5]}, 7, v{T[5]}")
        k.e(f"v_and_b32 v{T[6]}, 7, v{lane}")
        k.e(f"v_xor_b32 v{T[5]}, v{T[5]}, v{T[6]}")
        k.e(f"v_add_u32 v{T[4]}, s{S_M0}, v{T[4]}")
        k.e(f"v_mul_u32_u24 v{T[4]}, {XROW}, v{T[4]}")
        k.e(f"v_lshl_add_u32 v{V_DMA[h]}, v{T[5]}, 4, v{T[4]}")
    slot, r = V_TID, T[3]
    k.e(f"v_subrev_u32 v{r}, 144, v{slot}")
    k.e(f"v_cmp_gt_u32 vcc, 144, v{slot}")
    k.e("s_nop 1")
    k.e(f"v_cndmask_b32 v{r}, v{r}, v{slot}, vcc")
    k.e(f"v_sub_u32 v{T[7]}, v{slot}, v{r}")
    k.e(f"v_and_b32 v{T[4]}, 15, v{r}")
    k.e(f"v_lshrrev_b32 v{T[4]}, 2, v{T[4]}")
    k.e(f"v_lshlrev_b32 v{T[4]}, 3, v{T[4]}")
    k.e(f"v_lshrrev_b32 v{T[5]}, 4, v{r}")
    k.e(f"v_and_b32 v{T[5]}, 1, v{T[5]}")
    k.e(f"v_lshl_add_u32 v{T[4]}, v{T[5]}, 2, v{T[4]}")
    k.e(f"v_and_b32 v{T[5]}, 3, v{r}")
    k.e(f"v_add_u32 v{T[4]}, v{T[4]}, v{T[5]}")
    k.e(f"v_and_b32 v{T[5]}, 0xe0, v{r}")
    k.e(f"v_add_u32 v{T[4]}, v{T[4]}, v{T[5]}")
    k.e(f"v_cmp_gt_u32 vcc, 128, v{r}")
    k.e("s_nop 1")
    k.e(f"v_cndmask_b32 v{T[4]}, v{r}, v{T[4]}, vcc")
    k.e(f"v_add_u32 v{T[4]}, v{T[4]}, v{T[7]}")
    k.e(f"v_add_u32 v{T[4]}, s{S_NC0}, v{T[4]}")
    k.e(f"v_lshlrev_b32 v{V_VQ}, 2, v{T[4]}")
    k.e(f"v_lshlrev_b32 v{T[4]}, 1, v{T[4]}")
    k.e(f"v_lshlrev_b32 v{V_VW}, 4, v{slot}")
    k.e(f"v_add_u32 v{V_VW1}, {BUF}, v{V_VW}")
    k.e(f"v_add_u32 v{V_VB1}, {BUF}, v{V_VB}")
    k.e("s_waitcnt lgkmcnt(0)")
    srd(k, S_XSRD, 4, 5, M * XROW)
    srd(k, S_QSRD, 6, 7, 57 * N * 4)
    srd(k, S_SSRD, 8, 9, N * 2)
    srd(k, S_ZSRD, 10, 11, N * 2)
    srd(k, S_OSRD, 12, 13, M * N * 2)

    def body(k, dq):
        if dq:
            k.e(f"v_cmp_gt_u32 vcc, 288, v{V_TID}")
            k.e(f"s_mov_b64 s[56:57], vcc")
            k.e(f"s_and_saveexec_b64 s[{S_EX}:{S_EX+1}], vcc")
            k.vmem(f"buffer_load_ushort v{V_S}, v{T[4]}, s[{S_SSRD}:{S_SSRD+3}], 0 offen")
            sz = k.vmem(f"buffer_load_ushort v{V_ZS}, v{T[4]}, s[{S_ZSRD}:{S_ZSRD+3}], 0 offen")
            sq = {0: q_loads(k, 0), 1: q_loads(k, 1)}
            k.e(f"s_mov_b64 exec, s[{S_EX}:{S_EX+1}]")
        sa = {0: a_dma(k, 0)}
        k.stamp(1)
        if dq:
            k.e(f"s_and_saveexec_b64 s[{S_EX}:{S_EX+1}], vcc")
            k.wait_vm(sz)
            k.e(f"v_lshlrev_b32 v{V_S}, 16, v{V_S}")
            k.e(f"v_lshlrev_b32 v{V_ZS}, 16, v{V_ZS}")
            k.e(f"v_mul_f32 v{V_ZS}, v{V_ZS}, v{V_S}")
            for op in dq_stream(0, sq[0]):
                op(k)
            k.e(f"s_mov_b64 exec, s[{S_EX}:{S_EX+1}]")
        k.stamp(3)
        for c in range(NCH):
            k.wait_vm(sa[c])
            k.wait_lg_all()
            k.e("s_barrier")
            if c == 0:
                k.stamp(4)
            V = None
            if c + 1 < NCH:
                sa[c + 1] = a_dma(k, c + 1)
                if dq:
                    V = []
                    if c + 2 < NCH:
                        def ql(kk, c=c):
                            sq[c + 2] = q_loads(kk, c + 2)
                        V.append(ql)
                    V += dq_stream(c + 1, sq[c + 1])
            compute(k, c, V)
        k.stamp(5)
        k.e("s_nop 7")
        k.e("s_nop 1")
        si = 0
        for mb in range(2):
            so = "0" if mb == 0 else f"s{S_O1}"
            for pp in range(4):
                stg = [V_STG[0], V_STG[1], V_T[0], V_T[4]][si % 4]
                si += 1
                P, Q = acc(2 * pp, mb), acc(2 * pp + 1, mb)
                k.e(f"v_cvt_pk_bf16_f32 v{stg}, v{P}, v{P + 1}")
                k.e(f"v_cvt_pk_bf16_f32 v{stg + 1}, v{P + 2}, v{P + 3}")
                k.e(f"v_cvt_pk_bf16_f32 v{stg + 2}, v{Q}, v{Q + 1}")
                k.e(f"v_cvt_pk_bf16_f32 v{stg + 3}, v{Q + 2}, v{Q + 3}")
                k.vmem(f"buffer_store_dwordx4 {r4(stg)}, v{V_VO}, s[{S_OSRD}:{S_OSRD+3}], {so} offen offset:{64 * pp}")
            stg = [V_STG[0], V_STG[1], V_T[0], V_T[4]][si % 4]
            si += 1
            R = acc(8, mb)
            k.e(f"v_cvt_pk_bf16_f32 v{stg}, v{R}, v{R + 1}")
            k.e(f"v_cvt_pk_bf16_f32 v{stg + 1}, v{R + 2}, v{R + 3}")
            k.vmem(f"buffer_store_dwordx2 {r2(stg)}, v{V_VO2}, s[{S_OSRD}:{S_OSRD+3}], {so} offen")
        k.stamp(6)

    k.e(f"s_cmp_ge_u32 s{S_WAVE}, 5")
    k.e("s_cbranch_scc1 L_NODQ")
    ka = k.fork()
    body(ka, True)
    ka.e("s_branch L_DONE")
    kb = k.fork()
    body(kb, False)
    k.out += ka.out
    k.label("L_NODQ")
    k.out += kb.out
    k.label("L_DONE")
    if DEBUG:
        k.e("s_waitcnt vmcnt(0)")
        k.stamp(7)
        k.e("s_mov_b32 s62, 256")
        k.e("s_mov_b32 s63, 0x20000")
        k.e("s_and_b32 s61, s61, 0xffff")
        k.e(f"s_cmp_eq_u32 s2, {DBG_WG}")
        k.e("s_cbranch_scc0 L_END")
        k.e(f"s_cmp_eq_u32 s{S_WAVE}, {DBG_WAVE}")
        k.e("s_cbranch_scc0 L_END")
        k.e("s_mov_b64 exec, 1")
        for i in (1, 3, 4, 5, 6, 7):
            k.e(f"s_sub_u32 s{64 + 2 * i}, s{64 + 2 * i}, s64")
        for i in (1, 3, 4, 5, 6, 7):
            k.e(f"v_mov_b32 v16, s{64 + 2 * i}")
            k.e(f"v_mov_b32 v17, {4 * i}")
            k.e("buffer_store_dword v16, v17, s[60:63], 0 offen")
            k.e("s_waitcnt vmcnt(0)")
    k.label("L_END")
    k.e("s_endpgm")
    return k


HEADER = open("standalone__weight_only_int_gptq__prompt.s.ref").read()


def main():
    k = gen()
    lines = HEADER.split("\n")
    out = []
    for ln in lines:
        if ln.startswith("; @launch"):
            out.append(f"; @launch grid=(256,1,1) block=(512,1,1) lds={LDS_TOTAL}")
            continue
        out.append(ln)
        if ln.startswith("standalone__weight_only_int_gptq__prompt_kernel:"):
            out += k.out
            break
    idx = lines.index("s_endpgm")
    out += lines[idx + 1:]
    open(OUTFILE, "w").write("\n".join(out))


if __name__ == "__main__":
    main()
```
